```python
import torch

def _softmax(x, axis=-1):
    return torch.softmax(x, dim=axis)
def _gelu(x):
    return torch.nn.functional.gelu(x, approximate="tanh")
def _silu(x):
    return torch.nn.functional.silu(x)
def _sigmoid(x):
    return torch.sigmoid(x)
def _layernorm(x, axis=-1, eps=1e-5):
    m = x.mean(dim=axis, keepdim=True)
    v = x.var(dim=axis, keepdim=True, unbiased=False)
    return (x - m) / torch.sqrt(v + eps)
def _scatter_add(tgt, idx, src, axis=0):
    return tgt.clone().index_add_(axis, idx, src)
def _segment_sum(src, seg, n):
    out = torch.zeros((n,) + src.shape[1:], dtype=src.dtype)
    return out.index_add_(0, seg, src)
def _pad(x, pw):
    flat = tuple(v for pair in reversed(pw) for v in pair)
    return torch.nn.functional.pad(x, flat)

kernel_name = 'standalone__hybrid_graph_tf_nagphormer__graph'

def setup_inputs():

    _w = (lambda a: (lambda t: t.to(torch.bfloat16) if t.is_floating_point() else t)(torch.as_tensor(a)))
    N, deg, D = 50000, 16, 64
    E = N * deg
    src = (lambda lo, hi, *s: torch.randint(lo, hi, s))(0, N, E).to(torch.int64)
    dst = (lambda lo, hi, *s: torch.randint(lo, hi, s))(0, N, E).to(torch.int64)
    deg_cnt = torch.bincount(dst, minlength=N).to(float) + 1.0
    sc = 1.0 / D ** 0.5
    return {
        "x": _w((lambda *s: torch.randn(*s, dtype=torch.bfloat16) * 0.1)(N, D)),
        "src": _w(src),
        "dst": _w(dst),
        "deg_inv_sqrt": _w(1.0 / (lambda _x: torch.sqrt(torch.as_tensor(_x)))(deg_cnt)),
        "wq": _w((lambda *s: torch.randn(*s, dtype=torch.bfloat16) * 3.2)(D, D) * sc),
        "wk": _w((lambda *s: torch.randn(*s, dtype=torch.bfloat16) * 3.2)(D, D) * sc),
        "wv": _w((lambda *s: torch.randn(*s, dtype=torch.bfloat16) * 0.1)(D, D) * sc),
        "wo": _w((lambda *s: torch.randn(*s, dtype=torch.bfloat16) * 0.1)(D, D) * sc),
        "w_r": _w((lambda *s: torch.randn(*s, dtype=torch.bfloat16) * 0.1)(D)),
    }

def reference(x, src, dst, deg_inv_sqrt, wq, wk, wv, wo, w_r):
    N, D = x.shape[0], x.shape[1]
    K = 7
    h = x
    toks = [x]
    for _ in range(K):
        msg = h[src] * deg_inv_sqrt[src, None] * deg_inv_sqrt[dst, None]
        h = _segment_sum(msg, dst, N)
        toks.append(h)
    tok = torch.stack(toks, axis=1)
    t = _layernorm(tok, axis=-1)
    q   = torch.einsum('nkd,de->nke', t, wq)
    key = torch.einsum('nkd,de->nke', t, wk)
    v   = torch.einsum('nkd,de->nke', t, wv)
    scale = 1.0 / (D ** 0.5)
    attn = _softmax(torch.einsum('nkd,nld->nkl', q, key) * scale, axis=-1)
    o = torch.einsum('nkl,nld->nkd', attn, v)
    o = tok + torch.einsum('nkd,de->nke', o, wo)
    r = _layernorm(o, axis=-1)
    alpha = _softmax(torch.einsum('nkd,d->nk', r, w_r), axis=-1)
    return torch.einsum('nk,nkd->nd', alpha, o)
```

```python
from asmlib import *
N=50000; E=800000; BK=196
NCH=250; CH=3200
DL=25088
NLINES=62592
TABSTR=0x800000
WS_ENT =0x4000000
WS_OFF =0x4400000
WS_WFR =0x4500000
WS_SYNC=0x4600000
WS_VOTE=0x4610000
WS_PROBE=0x4800000
WS_DBG =0x6000000
LOG2E=1.4426950408889634
import struct
def fbits(x): return '0x%08x'%struct.unpack('<I',struct.pack('<f',x))[0]
ALL='row_mask:0xf bank_mask:0xf'
def line0(a, d, n, t0, t1, sDLm1, mask, flag=None):
    a(f'''v_lshrrev_b32 v{t0}, 2, v{n}
    v_and_b32 v{t1}, 3, v{n}
    v_cmp_eq_u32 {mask}, 0, v{t1}
    v_sub_u32 v{d}, v{n}, v{t0}
    v_and_b32 v{t1}, 0xffffffc0, v{t0}
    {f'v_add3_u32 v{t1}, v{t1}, v{t0}, {flag}' if flag else f'v_add_u32 v{t1}, v{t1}, v{t0}'}
    v_lshrrev_b32 v{t0}, 13, v{t0}
    v_add_u32 v{d}, {sDLm1}, v{d}
    v_lshl_or_b32 v{t1}, v{t0}, 6, v{t1}
    v_cndmask_b32 v{d}, v{d}, v{t1}, {mask}''')
def wave_scan(a, v):
    for c in ['row_shr:1 '+ALL,'row_shr:2 '+ALL,'row_shr:4 '+ALL,'row_shr:8 '+ALL,'row_bcast:15 row_mask:0xa bank_mask:0xf','row_bcast:31 row_mask:0xc bank_mask:0xf']:
        a(f's_nop 1\nv_add_u32_dpp v{v}, v{v}, v{v} {c}')

DUALBIT=30
def interleave(lists):
    out=[]; i=0
    while any(i<len(l) for l in lists):
        for l in lists:
            if i<len(l): out.append(l[i])
        i+=1
    return out
```

```python
from common import *
from k2 import *
from lsched import Op, schedule, emit
OOBL=0x30000
MA=192; WB=224
aT=176; aS=178; aTR=180; aO=184; aMU=186; aSD=187; aAW=189; mA=190; mB=191
aAR=160; DLT=164; aMD=168; vL2=169; vC2=170
OUT=28; POOL=44; TT=76; BP=92; UU=132; SA=148; SB=152
AYA=[0,4,8,16]; AYB=[20,24,156,172]
sVALID='s[64:65]'; sNSW='s66'; sC1='s67'; sIT=68; sDT=69
SRD_O='s[28:31]'
def setup(a):
    t=vT
    a(f'''s_add_u32 s54, s14, {WS_WFR}
    s_addc_u32 s55, s15, 0
    s_load_dword s53, s[54:55], {20480+63*4}
    v_lshlrev_b32 v{t}, 4, v{vLANE}
    v_add_u32 v{aMD}, {MDL}, v{t}
    s_and_b32 s56, s{sWAVE}, 3
    s_lshl_b32 s56, s56, 10
    v_add_u32 v{t+1}, s56, v{t}
    v_add_u32 v{t+2}, 16384, v{t+1}
    global_load_dwordx4 {vr(t+4,4)}, v{t+2}, s[54:55]''')
    for i in range(16):
        if i%4==0 and i: a(f'v_add_u32 v{t}, 4096, v{t}')
        a(f'global_load_dwordx4 {vr(MA+4*i,4)}, v{t}, s[54:55] offset:{1024*(i%4)}')
    i_,g_,k_,x_,y_=t+8,t+9,t+10,t+11,t+12
    a(f'''v_and_b32 v{i_}, 15, v{vLANE}
    v_lshrrev_b32 v{g_}, 4, v{vLANE}
    s_lshl_b32 s56, s{sWAVE}, 14
    v_bfe_u32 v{x_}, v{vLANE}, 3, 1
    v_mul_u32_u24 v{x_}, 0x70, v{x_}
    v_xor_b32 v{x_}, v{x_}, v{vSUB}
    v_lshl_or_b32 v{x_}, v{i_}, 7, v{x_}
    v_or_b32 v{x_}, s56, v{x_}
    v_lshlrev_b32 v{y_}, 4, v{g_}
    v_xor_b32 v{aT}, v{x_}, v{y_}
    v_xor_b32 v{aT+1}, 64, v{aT}
    v_xor_b32 v{aS}, 0x470, v{aT}
    v_xor_b32 v{aS+1}, 64, v{aS}
    v_and_b32 v{y_}, 1, v{g_}
    v_lshrrev_b32 v{k_}, 1, v{g_}
    v_lshl_or_b32 v{y_}, v{y_}, 1, v{k_}
    v_lshlrev_b32 v{y_}, 4, v{y_}
    v_xor_b32 v{aO}, v{x_}, v{y_}
    v_xor_b32 v{aO+1}, 64, v{aO}''')
    a(f'''v_lshlrev_b32 v{x_}, 1, v{vSUB}
    v_cmp_gt_u32 s[56:57], 8, v{i_}
    v_mov_b32 v{t+13}, {OOB}''')
    for s in range(4): a(f'ds_bpermute_b32 v{vROW+s}, v{x_}, v{vROW+s}')
    a('s_waitcnt lgkmcnt(0)')
    for s in range(4): a(f'v_add_u32 v{vROW+s}, v{vROW+s}, v{y_}\nv_cndmask_b32 v{vROW+s}, v{t+13}, v{vROW+s}, s[56:57]')
    a(f'''s_lshl_b32 s56, s{sWAVE}, 14
    v_lshrrev_b32 v{x_}, 2, v{vLANE}
    v_and_b32 v{y_}, 7, v{x_}
    v_bfe_u32 v{t+13}, v{vLANE}, 1, 1
    v_xor_b32 v{y_}, v{y_}, v{t+13}
    v_mul_u32_u24 v{t+13}, 7, v{k_}
    v_xor_b32 v{y_}, v{y_}, v{t+13}
    v_lshlrev_b32 v{y_}, 4, v{y_}
    v_lshl_or_b32 v{y_}, v{x_}, 7, v{y_}
    v_and_b32 v{t+13}, 1, v{vLANE}
    v_lshl_or_b32 v{y_}, v{t+13}, 3, v{y_}
    v_or_b32 v{aTR}, s56, v{y_}
    v_xor_b32 v{aTR+1}, 32, v{aTR}
    v_xor_b32 v{aTR+2}, 64, v{aTR}
    v_xor_b32 v{aTR+3}, 0x60, v{aTR}
    s_mul_i32 s56, s{sWAVE}, 768
    s_add_u32 s56, s56, {STAT}
    v_lshl_add_u32 v{aMU}, v{i_}, 2, s56
    v_mov_b32 v{t+13}, {OOBL}
    v_add_u32 v{x_}, 6400, v{aMU}
    v_lshrrev_b32 v{y_}, 1, v{i_}
    v_lshlrev_b32 v{t+14}, 1, v{g_}
    v_cmp_eq_u32 s[56:57], v{y_}, v{t+14}
    v_add_u32 v{t+14}, 1, v{t+14}
    v_cmp_eq_u32 vcc, v{y_}, v{t+14}
    v_cndmask_b32 v{aSD}, v{t+13}, v{x_}, s[56:57]
    s_lshl_b32 s56, s{sWAVE}, 6
    v_cndmask_b32 v{aSD+1}, v{t+13}, v{x_}, vcc
    s_add_u32 s56, s56, {ASCR}
    v_lshlrev_b32 v{x_}, 5, v{k_}
    v_lshl_add_u32 v{x_}, v{i_}, 1, v{x_}
    v_add_u32 v{aAW}, s56, v{x_}
    v_lshl_add_u32 v{x_}, v{g_}, 3, s56
    v_sub_u32 v{y_}, v{i_}, v{k_}''')
    for q in range(4):
        a(f'''v_cmp_eq_u32 vcc, {2*q}, v{y_}
        s_nop 1
        v_cndmask_b32 v{aAR+q}, v{t+13}, v{x_}, vcc''')
    a(f'''v_lshlrev_b32 v{y_}, 2, v{g_}
    v_sub_u32 v{y_}, v{i_}, v{y_}''')
    for r in range(4):
        a(f'''v_cmp_eq_u32 vcc, {r}, v{y_}
        s_nop 1
        v_cndmask_b32 v{DLT+r}, 0, v{vCHI}, vcc''')
    a(f'''v_lshrrev_b32 v{y_}, 3, v{i_}
    v_cmp_eq_u32 vcc, v{y_}, v{k_}
    v_mov_b32 v{vL2}, v{vLDS}
    v_mov_b32 v{vC2}, {fbits(EPS/LOG2E**2)}
    v_cndmask_b32 v{mA}, 0, -1, vcc
    v_add_u32 v{t+1}, {MDL}, v{t+1}
    v_not_b32 v{mB}, v{mA}
    s_waitcnt vmcnt(16)
    ds_write_b128 v{t+1}, {vr(t+4,4)}
    s_waitcnt lgkmcnt(0)''')
def q(r): return vr(r,4)
def loadT(p):
    PB=4096*p
    return [Op(f'ds_read_b128 {q(TT+4*s)}, v{aT+s} offset:{PB}',mem=[f'A{p}']) for s in range(2)]+[Op(f'ds_read_b128 {q(TT+8+4*s)}, v{aT+s} offset:{PB+2048}',mem=[f'B{p}']) for s in range(2)]
def mf(d,a_,b_,c): return Op(f'v_mfma_f32_16x16x32_bf16 {q(d)}, {q(a_)}, {q(b_)}, {q(c) if c is not None else 0}')
def cvt(d,s): return Op(f'v_cvt_pk_bf16_f32 v{d}, v{s}, v{s+1}')
def stageX(p):
    PB=4096*p; o=[]; TA=TT; TB=TT+8; UA=UU; UB=UU+8
    for t,(T,U) in enumerate(((TA,UA),(TB,UB))):
        for b in range(4): o.append(mf(POOL+16*t+4*b, MA+8*b, T, None))
        for b in range(4): o.append(mf(POOL+16*t+4*b, MA+8*b+4, T+4, POOL+16*t+4*b))
        for b in range(4): o+= [cvt(U+2*b,POOL+16*t+4*b), cvt(U+2*b+1,POOL+16*t+4*b+2)]
    o+=[Op(f'ds_read_b128 {q(TB+4*s)}, v{aS+s} offset:{PB+2048}',mem=[f'B{p}']) for s in range(2)]
    o+=[mf(SA,TA,UA,None),mf(SA,TA+4,UA+4,SA),mf(SB,TB,UB,None),mf(SB,TB+4,UB+4,SB)]
    for t,(T,AY) in enumerate(((TA,AYA),(TB,AYB))):
        for b in range(4): o.append(Op(f'ds_read_b64_tr_b16 {vr(AY[b]+2,2)}, v{aTR+b} offset:{PB+2048*t}',mem=['AB'[t]+str(p)]))
        for b in range(4): o.append(mf(POOL+16*t+4*b, T, WB+8*b, None))
        for b in range(4): o.append(mf(POOL+16*t+4*b, T+4, WB+8*b+4, POOL+16*t+4*b))
        for b in range(4): o+= [cvt(AY[b],POOL+16*t+4*b), cvt(AY[b]+1,POOL+16*t+4*b+2)]
    for t in range(2):
        so=32*p+16*t
        o+=[Op(f'ds_read2_b32 {vr(UB+4*t+2*h,2)}, v{aMU} offset0:{so} offset1:{so}') for h in range(2)]
        o+=[Op(f'ds_read_b32 v{BP+4*t+2+h}, v{aSD+h} offset:{4*so}') for h in range(2)]
    S=SA; m=SB; m2=SB+1
    txt=[f'v_cndmask_b32 v{S+r}, v{SB+r}, v{SA+r}, {sVALID}' for r in range(4)]
    txt+=[f'v_max3_f32 v{m}, v{S}, v{S+1}, v{S+2}', f'v_max_f32 v{m}, v{m}, v{S+3}', f'v_mov_b32 v{m2}, v{m}', f'v_permlane16_swap_b32 v{m}, v{m2}', f'v_max_f32 v{m}, v{m}, v{m2}']
    txt+=[f'v_sub_f32 v{S+r}, v{S+r}, v{m}' for r in range(4)]+[f'v_exp_f32 v{S+r}, v{S+r}' for r in range(4)]
    txt+=[f'v_add_f32 v{m}, v{S}, v{S+1}', f'v_add_f32 v{m2}, v{S+2}, v{S+3}', f'v_add_f32 v{m}, v{m}, v{m2}', f'v_mov_b32 v{m2}, v{m}', f'v_permlane16_swap_b32 v{m}, v{m2}', f'v_add_f32 v{m}, v{m}, v{m2}', f'v_rcp_f32 v{m}, v{m}']
    txt+=[f'v_mul_f32 v{S+r}, v{S+r}, v{m}' for r in range(4)]
    txt+=[f'v_cvt_pk_bf16_f32 v{S}, v{S}, v{S+1}', f'v_cvt_pk_bf16_f32 v{S+1}, v{S+2}, v{S+3}']
    txt+=[f'v_and_b32 v{BP+4*t+h}, v{S+h}, v{mA+t}' for t in range(2) for h in range(2)]
    o+=[Op(x) for x in txt]
    for t,AY in enumerate((AYA,AYB)):
        for b in range(4): o.append(mf(POOL+16*t+4*b, AY[b], BP+4*t, UB+4*t))
    o+=[Op(f'ds_read_b128 {q(AYA[i])}, v{aMD} offset:{1024*i}') for i in range(4)]
    for t,U in enumerate((UA,UB)):
        for b in range(4): o+= [cvt(U+2*b,POOL+16*t+4*b), cvt(U+2*b+1,POOL+16*t+4*b+2)]
        o+=[Op(f'ds_write_b128 v{aO+s}, {q(U+4*s)} offset:{PB+2048*t}',mem=['AB'[t]+str(p)]) for s in range(2)]
    for t,U in enumerate((UA,UB)):
        o+=[mf(BP+4*t,U,U,None), mf(BP+4*t,U+4,U+4,BP+4*t)]
    o+=[mf(SB,AYA[0],UA,None),mf(SB,AYA[1],UA+4,SB),mf(SB,AYA[2],UB,SB),mf(SB,AYA[3],UB+4,SB)]
    for t in range(2):
        for b in range(4): o.append(Op(f'ds_read_b64_tr_b16 {vr(AYB[b]+2*t,2)}, v{aTR+b} offset:{PB+2048*t}',mem=['AB'[t]+str(p)]))
    return o
def stageZ(p):
    GA=BP; GB=BP+4; x=GB; y=GB+1; z=GB+2; u=GB+3
    txt=[f'v_mul_f32 v{GA}, v{GA}, v{DLT}', f'v_mul_f32 v{GB}, v{GB}, v{DLT}']
    for r in range(1,4): txt+=[f'v_fmac_f32 v{GA}, v{GA+r}, v{DLT+r}', f'v_fmac_f32 v{GB}, v{GB+r}, v{DLT+r}']
    txt+=[f'v_permlane32_swap_b32 v{GA}, v{GB}', f'v_add_f32 v{x}, v{GA}, v{GB}', f'v_mov_b32 v{y}, v{x}', f'v_permlane16_swap_b32 v{x}, v{y}', f'v_add_f32 v{x}, v{x}, v{y}',
          f'v_mul_f32 v{z}, {fbits(-1/64)}, v{SB}', f'v_fma_f32 v{u}, v{SB}, {sNSW}, v{SB+1}', f'v_fmac_f32 v{x}, v{z}, v{SB}', f'v_max_f32 v{x}, 0, v{x}',
          f'v_fma_f32 v{x}, v{x}, {sC1}, v{vC2}', f'v_rsq_f32 v{x}, v{x}', f'v_mul_f32 v{x}, v{x}, v{u}',
          f'v_max_f32_dpp v{y}, v{x}, v{x} quad_perm:[1,0,3,2] {ALL}', f'v_max_f32_dpp v{y}, v{y}, v{y} quad_perm:[2,3,0,1] {ALL}', f'v_max_f32_dpp v{y}, v{y}, v{y} row_half_mirror {ALL}',
          f'v_sub_f32 v{x}, v{x}, v{y}', f'v_exp_f32 v{x}, v{x}',
          f'v_add_f32_dpp v{y}, v{x}, v{x} quad_perm:[1,0,3,2] {ALL}', f'v_add_f32_dpp v{y}, v{y}, v{y} quad_perm:[2,3,0,1] {ALL}', f'v_add_f32_dpp v{y}, v{y}, v{y} row_half_mirror {ALL}',
          f'v_rcp_f32 v{y}, v{y}', f'v_mul_f32 v{x}, v{x}, v{y}', f'v_cvt_pk_bf16_f32 v{x}, v{x}, v{x}']
    o=[Op(t) for t in txt]
    o.append(Op(f'ds_write_b16 v{aAW}, v{x}',mem=['AL']))
    o+=[Op(f'ds_read_b64 {vr(GA+2*t,2)}, v{aAR+2*p+t} offset:{32*t}',mem=['AL']) for t in range(2)]
    o+=[mf(OUT+4*b, AYB[b], GA, OUT+4*b if p else None) for b in range(4)]
    return o
def store():
    o=[cvt(OUT+i,OUT+2*i) for i in range(8)]
    o+=[Op(f'buffer_store_dwordx4 {q(OUT+4*s)}, v{vROW}, {SRD_O}, 0 offen offset:{64*s}') for s in range(2)]
    return o
def put(a,ops,carry=()):
    ops,t=schedule(ops); lines,fl=emit(ops,carry)
    for l in lines: a(l)
    return fl
def final(a):
    a(f'''s_mov_b32 s28, s12
    s_mov_b32 s29, s13
    s_mov_b32 s64, 0x00ff00ff
    s_mov_b32 s65, 0xff00ff00
    s_mov_b32 {sNSW}, s53
    s_mov_b32 {sC1}, {fbits(1/(64*LOG2E**2))}
    s_mov_b32 s{sIT}, 0
    s_waitcnt lgkmcnt(0)
    F_LOOP:''')
    put(a, loadT(0)+stageX(0)+loadT(1)+stageZ(0)+stageX(1)+stageZ(1)+store())
    import k2; k2.stamp(a)
    a(f'''s_add_u32 s{sIT}, s{sIT}, 1
    s_cmp_lg_u32 s{sIT}, 1
    s_cbranch_scc1 F_NODUMP''')
    for k in range(8):
        a(f'v_xor_b32 v{POOL+k}, {k*0x90}, v{vL2}\nds_write_b128 v{POOL+k}, {q(vTOK+4*k)}')
    a(f'''F_NODUMP:
    s_mov_b32 s{sDT}, 8192
    s_cmp_eq_u32 s{sIT}, 2
    s_cselect_b32 s{sDT}, -8192, s{sDT}
    s_cmp_eq_u32 s{sIT}, 3
    s_cselect_b32 s{sDT}, 16384, s{sDT}''')
    for r in range(aT,aO+2): a(f'v_add_u32 v{r}, s{sDT}, v{r}')
    for r in range(aMU,aSD+2): a(f'v_add_u32 v{r}, 256, v{r}')
    for s in range(3): a(f'v_mov_b32 v{vROW+s}, v{vROW+s+1}')
    a(f'''s_cmp_lt_u32 s{sIT}, 3
    s_cbranch_scc1 F_LOOP
    s_cmp_lg_u32 s{sWAVE}, 7
    s_cbranch_scc1 K2_END''')
    put(a, loadT(0)+stageX(0)+stageZ(0)+store())
```

```python
from common import *
NPROBE=6
PDELAY='s_nop 11'
def gen_k1(name='prep_kernel'):
    a=Asm()
    SORT=1024
    a(f'''s_cmp_ge_u32 s2, 256
    s_cbranch_scc1 K1_END
    s_load_dwordx8 s[4:11], s[0:1], 0
    s_load_dwordx2 s[12:13], s[0:1], 88
    s_cmp_ge_u32 s2, {NCH}
    s_cbranch_scc1 K1_SPECIAL
    v_lshlrev_b32 v1, 2, v0
    v_mov_b32 v2, 0
    ds_write_b32 v1, v2
    s_mul_i32 s14, s2, {CH*4}
    s_mul_i32 s15, s2, {200*128}
    s_mul_i32 s16, s2, 200
    v_cmp_gt_u32 vcc, 800, v0
    v_lshl_add_u32 v3, v0, 4, s14
    v_lshl_add_u32 v4, v0, 4, s15
    v_lshrrev_b32 v6, 3, v0
    s_and_b64 exec, exec, vcc
    v_add_u32 v6, s16, v6
    v_add_u32 v5, {100*128}, v4
    v_lshlrev_b32 v8, 1, v6
    v_mov_b32 v28, 0
    v_mov_b32 v29, 0
    s_waitcnt lgkmcnt(0)
    global_load_dwordx4 v[12:15], v3, s[8:9]
    global_load_dwordx4 v[16:19], v3, s[6:7]
    global_load_dwordx4 v[20:23], v4, s[4:5]
    global_load_dwordx4 v[24:27], v5, s[4:5]
    global_load_short_d16_hi v28, v8, s[10:11]
    global_load_short_d16_hi v29, v8, s[10:11] offset:200
    s_mov_b32 s17, 85599
    s_mov_b32 s18, {DL-1}
    s_movk_i32 s19, 5368
    s_movk_i32 s20, {-BK}
    s_mov_b32 s21, {1<<DUALBIT}
    s_add_u32 s22, s12, {WS_ENT}
    s_addc_u32 s23, s13, 0
    s_add_u32 s24, s12, {WS_OFF}
    s_addc_u32 s25, s13, 0
    v_add_u32 v7, 100, v6''')
    line0(a,10,6,30,31,'s18','s[26:27]')
    line0(a,11,7,30,31,'s18','s[28:29]')
    a('''v_and_b32 v30, 7, v0
    v_lshlrev_b32 v30, 4, v30
    v_lshl_add_u32 v10, v10, 7, v30
    v_lshl_add_u32 v11, v11, 7, v30
    s_barrier
    v_mov_b32 v9, 1
    s_waitcnt vmcnt(5)''')
    for j in range(4):
        a(f'''v_mul_u32_u24 v{32+j}, s17, v{12+j}
        v_lshrrev_b32 v{32+j}, 24, v{32+j}
        v_mad_i32_i24 v{12+j}, v{32+j}, s20, v{12+j}
        v_lshlrev_b32 v{32+j}, 2, v{32+j}
        ds_add_rtn_u32 v{36+j}, v{32+j}, v9''')
    a('s_waitcnt vmcnt(4)')
    for j in range(4):
        a(f'''v_mul_u32_u24 v30, s19, v{16+j}
        v_lshrrev_b32 v30, 26, v30
        v_lshl_add_u32 v{12+j}, v{12+j}, 2, v30''')
        line0(a,40+j,16+j,30,31,'s18','s[30:31]','s21')
        a(f'v_lshl_or_b32 v{40+j}, v{12+j}, 18, v{40+j}')
    a('''s_waitcnt lgkmcnt(0)
    s_barrier
    v_cmp_gt_u32 vcc, 64, v0
    s_cbranch_vccz K1_NOSCAN
    v_lshlrev_b32 v30, 4, v0
    ds_read_b128 v[44:47], v30
    s_lshl_b32 s14, s2, 10
    v_add_u32 v31, s14, v30
    s_waitcnt lgkmcnt(0)
    v_add_u32 v49, v44, v45
    v_add_u32 v50, v49, v46
    v_add_u32 v51, v50, v47
    v_mov_b32 v48, v51''')
    wave_scan(a,48)
    a(f'''v_sub_u32 v48, v48, v51
    v_add_u32 v51, v48, v50
    v_add_u32 v50, v48, v49
    v_add_u32 v49, v48, v44
    s_movk_i32 s14, {SORT}''')
    for j in range(4): a(f'v_lshl_add_u32 v{52+j}, v{48+j}, 2, s14')
    a('ds_write_b128 v30, v[52:55]')
    for j in range(4): a(f'v_lshl_or_b32 v{44+j}, v{44+j}, 16, v{48+j}')
    a('''global_store_dwordx4 v31, v[44:47], s[24:25] sc1
    s_waitcnt lgkmcnt(0)
    K1_NOSCAN:
    s_barrier''')
    for j in range(4): a(f'ds_read_b32 v{32+j}, v{32+j}')
    a('s_waitcnt vmcnt(0)\ns_mov_b32 s14, 0xffff0000')
    for it,(b,dv) in enumerate(((20,28),(24,29))):
        for j in range(4):
            a(f'''v_lshlrev_b32 v30, 16, v{b+j}
            v_and_b32 v31, s14, v{b+j}
            v_mul_f32 v30, v30, v{dv}
            v_mul_f32 v31, v31, v{dv}
            v_cvt_pk_bf16_f32 v{b+j}, v30, v31''')
        a(f'global_store_dwordx4 v{10+it}, v[{b}:{b+3}], s[12:13] sc1')
        if it==0:
            a('s_waitcnt lgkmcnt(0)')
            for j in range(4):
                a(f'''v_lshl_add_u32 v{32+j}, v{36+j}, 2, v{32+j}
                ds_write_b32 v{32+j}, v{40+j}''')
    a(f'''v_xor_b32 v10, 0x2000, v10
    v_xor_b32 v11, 0x2000, v11
    s_mov_b64 s[32:33], exec
    s_and_b64 exec, s[32:33], s[26:27]
    global_store_dwordx4 v10, v[20:23], s[12:13] sc1
    s_and_b64 exec, s[32:33], s[28:29]
    global_store_dwordx4 v11, v[24:27], s[12:13] sc1
    s_mov_b64 exec, s[32:33]
    v_lshlrev_b32 v30, 4, v0
    s_waitcnt lgkmcnt(0)
    s_barrier
    ds_read_b128 v[44:47], v30 offset:{SORT}
    s_waitcnt lgkmcnt(0)
    global_store_dwordx4 v3, v[44:47], s[22:23] sc1
    K1_END:
    s_endpgm''')
    a(f'''K1_SPECIAL:
    v_lshrrev_b32 v1, 6, v0
    v_and_b32 v2, 63, v0
    v_readfirstlane_b32 s3, v1
    s_cmp_ge_u32 s2, {NCH+1}
    s_cbranch_scc1 K1_PROBE
    s_load_dwordx8 s[16:23], s[0:1], 32
    s_load_dwordx2 s[24:25], s[0:1], 64
    v_and_b32 v3, 15, v2
    v_lshrrev_b32 v4, 4, v2
    s_waitcnt lgkmcnt(0)
    s_add_u32 s26, s12, {WS_WFR}
    s_addc_u32 s27, s13, 0
    s_cmp_ge_u32 s3, 8
    s_cbranch_scc1 K1_MD''')
    a(f'''v_lshrrev_b32 v5, 2, v3
    v_and_b32 v6, 3, v3
    v_lshl_add_u32 v5, v5, 3, v6
    v_lshlrev_b32 v5, 7, v5
    v_lshl_add_u32 v5, v4, 4, v5
    v_add_u32 v6, 4096, v5
    s_and_b32 s14, s3, 3
    s_cmp_ge_u32 s3, 4
    s_cbranch_scc1 K1_WV''')
    def loadA(p):
        for rb in range(4):
            for s in range(2):
                a(f'global_load_dwordx4 {vr(16+8*rb+4*s,4)}, v{5+(rb>>1)}, {p} offset:{512*(rb&1)+64*s}')
    loadA('s[16:17]')
    a(f'''s_lshr_b32 s15, s14, 1
    s_lshl_b32 s15, s15, 12
    s_and_b32 s28, s14, 1
    s_lshl_b32 s28, s28, 9
    s_add_u32 s15, s15, s28
    v_add_u32 v7, s15, v5
    global_load_dwordx4 v[8:11], v7, s[18:19]
    global_load_dwordx4 v[12:15], v7, s[18:19] offset:64
    s_mov_b32 s29, {fbits(LOG2E/8)}
    s_branch K1_WMM
    K1_WV:''')
    loadA('s[20:21]')
    a(f'''s_lshl_b32 s15, s14, 5
    v_lshlrev_b32 v7, 10, v4
    v_lshl_add_u32 v7, v3, 1, v7
    v_add_u32 v7, s15, v7
    v_add_u32 v48, 4096, v7''')
    for s in range(2):
        for j in range(8):
            a(f'global_load_ushort v{64+8*s+j}, v{7 if s==0 else 48}, s[22:23] offset:{128*j}')
    a('s_waitcnt vmcnt(0)')
    for i in range(8): a(f'v_lshl_or_b32 v{8+i}, v{65+2*i}, 16, v{64+2*i}')
    a('''s_mov_b32 s29, 1.0
    K1_WMM:
    s_lshl_b32 s15, s3, 11
    v_lshl_add_u32 v7, v2, 4, s15
    s_waitcnt vmcnt(0)''')
    for rb in range(4):
        a(f'v_mfma_f32_16x16x32_bf16 {vr(48+4*rb,4)}, {vr(16+8*rb,4)}, v[8:11], 0')
    for rb in range(4):
        a(f'v_mfma_f32_16x16x32_bf16 {vr(48+4*rb,4)}, {vr(20+8*rb,4)}, v[12:15], {vr(48+4*rb,4)}')
    a('s_nop 7')
    for i in range(16): a(f'v_mul_f32 v{48+i}, s29, v{48+i}')
    for i in range(8): a(f'v_cvt_pk_bf16_f32 v{16+i}, v{48+2*i}, v{49+2*i}')
    a('''global_store_dwordx4 v7, v[16:19], s[26:27] sc1
    global_store_dwordx4 v7, v[20:23], s[26:27] offset:1024 sc1
    s_endpgm''')
    a(f'''K1_MD:
    s_cmp_ge_u32 s3, 9
    s_cbranch_scc1 K1_ZERO
    v_lshlrev_b32 v5, 3, v4
    v_lshlrev_b32 v6, 1, v2
    v_mov_b32 v7, 0''')
    for blk in range(4): a(f'global_load_dwordx2 {vr(8+2*blk,2)}, v5, s[24:25] offset:{32*blk}')
    a(f'''global_load_short_d16_hi v7, v6, s[24:25]
    v_and_b32 v5, 11, v3
    v_cmp_eq_u32 s[30:31], 0, v5
    v_cmp_eq_u32 s[32:33], 1, v5
    v_cmp_eq_u32 s[34:35], 8, v5
    v_cmp_eq_u32 s[36:37], 9, v5
    v_mov_b32 v6, 0x3f803f80
    v_cndmask_b32 v32, 0, v6, s[30:31]
    v_cndmask_b32 v33, 0, v6, s[34:35]
    s_waitcnt vmcnt(0)''')
    for i in range(8):
        a(f'v_cndmask_b32 v{16+i}, v32, v{8+i}, s[32:33]')
        a(f'v_cndmask_b32 v{24+i}, v33, v{8+i}, s[36:37]')
    a('v_lshlrev_b32 v5, 4, v2\nv_add_u32 v5, 16384, v5')
    for i in range(4): a(f'global_store_dwordx4 v5, {vr(16+4*i,4)}, s[26:27] offset:{1024*i} sc1')
    for c in ['row_shr:1 '+ALL,'row_shr:2 '+ALL,'row_shr:4 '+ALL,'row_shr:8 '+ALL,'row_bcast:15 row_mask:0xa bank_mask:0xf','row_bcast:31 row_mask:0xc bank_mask:0xf']:
        a(f's_nop 1\nv_add_f32_dpp v7, v7, v7 {c}')
    a(f'''v_lshlrev_b32 v5, 2, v2
    v_mul_f32 v7, {fbits(-1/64)}, v7
    v_add_u32 v5, 20480, v5
    global_store_dword v5, v7, s[26:27] sc1
    s_endpgm
    K1_ZERO:
    s_add_u32 s26, s12, {WS_SYNC}
    s_addc_u32 s27, s13, 0
    v_subrev_u32 v5, {9*64}, v0
    v_lshlrev_b32 v5, 7, v5
    v_mov_b32 v6, 0
    global_store_dword v5, v6, s[26:27] sc1
    s_endpgm''')
    a(f'''K1_PROBE:
    s_cmp_lg_u32 s3, 0
    s_cbranch_scc1 K1_END
    s_getreg_b32 s16, hwreg(HW_REG_XCC_ID)
    s_sub_u32 s14, s2, {NCH+1}
    s_lshl_b32 s15, s14, 8
    v_lshlrev_b32 v5, 12, v0
    v_add_u32 v5, s15, v5
    v_mov_b32 v4, 0
    s_waitcnt lgkmcnt(0)
    s_add_u32 s26, s12, {WS_PROBE}
    s_addc_u32 s27, s13, 0
    s_add_u32 s28, s12, {WS_VOTE}
    s_addc_u32 s29, s13, 0
    s_mov_b64 exec, 0xff
    global_atomic_add v6, v5, v4, s[26:27] sc0
    s_mov_b64 exec, 1
    s_mov_b32 s18, 0''')
    for i in range(NPROBE):
        base=(i>>1&1)*4096+(((i>>2)^(i>>1))&1)*16384
        first,second=(base,base+8192) if i%2==0 else (base+8192,base)
        a(f'''v_add_u32 v8, {first}, v5
        v_add_u32 v9, {second}, v5
        s_waitcnt vmcnt(0)
        global_atomic_add v6, v8, v4, s[26:27] sc0
        global_atomic_add v7, v9, v4, s[26:27] sc0
        s_waitcnt vmcnt(1)
        {PDELAY}
        s_getreg_b32 s17, hwreg(HW_REG_IB_STS, 0, 4)
        {'s_sub_i32' if i%2==0 else 's_add_i32'} s18, s18, s17''')
    a(f'''s_sub_i32 s17, 0, s18
    s_bitcmp1_b32 s16, 2
    s_cselect_b32 s18, s17, s18
    s_lshl_b32 s14, s14, 2
    v_mov_b32 v5, s14
    s_waitcnt vmcnt(0)
    v_mov_b32 v6, s18
    global_store_dword v5, v6, s[28:29] sc1
    s_endpgm''')
    return (name,a.text(),80,48,832), 1024+CH*4
if __name__=='__main__':
    import sys
    if len(sys.argv)>1: PDELAY=sys.argv[1].replace(';','\n')
    k,lds=gen_k1()
    build_module([k],96,sys.argv[2] if len(sys.argv)>2 else 'k1')
    print('lds',lds)
```

```python
from common import *
W=5
SLICES=[(0,21,23,25),(6,7,16,25),(2,9,20,25),(1,15,19,25),(4,12,13,25),(8,10,11,25),(3,5,22,25),(14,17,18,24)]
CNT=0; HIST=3328; FLAG=3584; NODEOF=3712; SMAP=4608; LIST=8192; LSTR=132
STAT=139264; ASCR=152064; MDL=152576; LDS_TOTAL=156672
OOB=0x7f000000
vLANE=1; vSUB=2; vADDR=3; vLDS=4; vSTAT=5; vCLO=6; vCHI=7
vST=8; vROW=12; vDIS=16; vD2=20; vDL=24; vEO=28; vACC=44; vD=76; vTOK=100; vT=132; vC=176
sWAVE=3; sB=4; sN0=5; sK=6; sT=7
SRD_G='s[16:19]'; SRD_S='s[20:23]'; SRD_E='s[24:27]'; SRD_X='s[28:31]'; SRD_D='s[32:35]'
sSYNC=36; sM1=38; sM2=40; sDUAL=42; sSIDE=50; sSLOW=51; sDEAD=52
NR=5
EPS=1e-5

def stats_ops(av, s, tmp, scale, d2, tokdst, ldsoff, sK90, sKmask):
    t0,t1,t2,t3=tmp,tmp+1,tmp+2,tmp+3
    o=[]
    o+= [f'v_add_f32 v{t0}, v{av}, v{av+1}', f'v_add_f32 v{t1}, v{av+2}, v{av+3}', f'v_add_f32 v{t2}, v{av+4}, v{av+5}', f'v_add_f32 v{t3}, v{av+6}, v{av+7}',
         f'v_add_f32 v{t0}, v{t0}, v{t1}', f'v_add_f32 v{t2}, v{t2}, v{t3}', f'v_add_f32 v{t0}, v{t0}, v{t2}']
    red=lambda t:[f'DPP v_add_f32_dpp v{t}, v{t}, v{t} quad_perm:[1,0,3,2] {ALL}', f'DPP v_add_f32_dpp v{t}, v{t}, v{t} quad_perm:[2,3,0,1] {ALL}', f'DPP v_add_f32_dpp v{t}, v{t}, v{t} row_half_mirror {ALL}']
    o+=red(t0)
    o+=[f'v_mul_f32 v{t0}, {fbits(1/64)}, v{t0}']
    o+=[f'v_sub_f32 v{av+i}, v{av+i}, v{t0}' for i in range(8)]
    o+=[f'v_mul_f32 v{t1}, v{av}, v{av}', f'v_mul_f32 v{t2}, v{av+1}, v{av+1}']
    o+=[f'v_fmac_f32 v{t1+(i&1)}, v{av+i}, v{av+i}' for i in range(2,8)]
    o+=[f'v_add_f32 v{t1}, v{t1}, v{t2}']
    o+=red(t1)
    if d2 is not None: o+=[f'v_mul_f32 v{t1}, v{t1}, v{d2}', f'v_mul_f32 v{t0}, v{t0}, v{scale}']
    o+=[f'v_mov_b32 v{t2}, {fbits(EPS)}', f'v_fmac_f32 v{t2}, {fbits(1/64)}, v{t1}', f'v_sqrt_f32 v{t1}, v{t2}',
        f'TRN v_cvt_pk_bf16_f32 v{t1}, v{t1}, v{t1}', f'v_and_b32 v{t2}, 0xffff0000, v{t1}', f'v_rcp_f32 v{t2}, v{t2}',
        f'v_and_b32 v{t1}, {sKmask}, v{t1}']
    if scale is not None: o+=[f'v_mul_f32 v{t2}, v{t2}, v{scale}']
    o+=[f'v_mul_f32 v{av+i}, v{av+i}, v{t2}' for i in range(8)]
    o+=[f'v_cvt_pk_bf16_f32 v{tokdst+i}, v{av+2*i}, v{av+2*i+1}' for i in range(4)]
    return o
def emit_ops(a, ops, solo):
    for op in ops:
        if op.startswith('DPP '):
            if solo: a('s_nop 1')
            op=op[4:]
        elif op.startswith('TRN '):
            if solo: a('s_nop 0')
            op=op[4:]
        a(op)

def emit_tokens(a, src, scaled, tag):
    for i in range(28): a(f'v_mov_b32 v{vTOK+i}, v{vTOK+4+i}')
    tp=vT+16
    dst=[src, src+8, vTOK+28]
    ls=[stats_ops(src+8*s, s, tp+4*s, vDIS+s if scaled else None, vD2+s if scaled else None, dst[s], 0,'s60','s61') for s in range(3)]
    emit_ops(a, interleave(ls), False)
    a(f'''v_xor_b32 v{vADDR}, s60, v{vLDS}
    v_add_u32 v{tp+3}, s62, v{vSTAT}
    ds_write_b128 v{vADDR}, {vr(src,4)}
    ds_write_b128 v{vADDR}, {vr(src+8,4)} offset:8192
    s_mov_b64 exec, s[58:59]''')
    for s in range(3): a(f'ds_write2st64_b32 v{tp+3}, v{tp+4*s}, v{tp+4*s+1} offset0:{s} offset1:{25+s}')
    a(f'''s_mov_b64 exec, -1
    s_cmp_lg_u32 s{sWAVE}, 7
    s_cbranch_scc1 TOK_DONE_{tag}''')
    emit_ops(a, stats_ops(src+24, 3, tp+4, vDIS+3 if scaled else None, vD2+3 if scaled else None, src+24, 0,'s60','s61'), True)
    a(f'''ds_write_b128 v{vADDR}, {vr(src+24,4)} offset:16384
    s_mov_b64 exec, s[58:59]
    ds_write2st64_b32 v{tp+3}, v{tp+4}, v{tp+5} offset0:3 offset1:28
    s_mov_b64 exec, -1
    TOK_DONE_{tag}:''')
def set_tok_index(a, k):
    a(f'''s_mul_i32 s60, {k}, 0x90
    s_bitcmp1_b32 s60, 4
    s_cselect_b32 s61, 0xffff0000, s63
    s_lshl_b32 s62, {k}, 2''')

def gen_k2(name='main_kernel', dbg=None, final=None, setup=None):
    a=Asm()
    vE=44; vKA=64; vRK=84; vREM=104
    a(f'''s_cmp_ge_u32 s2, 256
    s_cbranch_scc1 K2_END
    s_load_dwordx2 s[14:15], s[0:1], 88
    s_load_dwordx2 s[8:9], s[0:1], 0
    s_load_dwordx2 s[10:11], s[0:1], 24
    s_load_dwordx2 s[12:13], s[0:1], 72
    s_getreg_b32 s{sSIDE}, hwreg(HW_REG_XCC_ID)
    s_and_b32 s{sB}, s2, 7
    s_lshl_b32 s{sB}, s{sB}, 5
    s_lshr_b32 s54, s2, 3
    s_add_u32 s{sB}, s{sB}, s54
    s_mul_i32 s{sN0}, s{sB}, {BK}
    v_lshrrev_b32 v8, 6, v0
    v_lshrrev_b32 v9, 1, v0
    v_readfirstlane_b32 s{sWAVE}, v8
    s_lshl_b32 s54, s{sB}, 2
    s_add_u32 s54, s54, {WS_OFF-WS_ENT}
    v_lshl_add_u32 v10, v9, 10, s54
    s_mov_b32 s26, {WS_OFF-WS_ENT+NCH*1024}
    s_mov_b32 s27, 0x20000
    s_waitcnt lgkmcnt(0)
    s_add_u32 s24, s14, {WS_ENT}
    s_addc_u32 s25, s15, 0
    buffer_load_dword v11, v10, {SRD_E}, 0 offen
    s_add_u32 s54, s14, {WS_VOTE}
    s_addc_u32 s55, s15, 0
    s_load_dwordx8 s[64:71], s[54:55], 0
    v_lshlrev_b32 v12, 4, v0
    v_mov_b32 v16, 0
    v_mov_b32 v17, 0
    v_mov_b32 v18, 0
    v_mov_b32 v19, 0
    v_mov_b32 v20, -1
    v_mov_b32 v21, -1
    v_mov_b32 v22, -1
    v_mov_b32 v23, -1
    ds_write_b128 v12, v[16:19]''')
    for i in range(4): a(f'ds_write_b128 v12, v[20:23] offset:{LIST+8192*i}')
    a(f'''v_and_b32 v{vLANE}, 63, v0
    v_and_b32 v13, 1, v0
    v_mul_u32_u24 v9, {CH}, v9
    v_lshl_add_u32 v9, v13, 2, v9
    v_lshlrev_b32 v13, 2, v13
    v_mov_b32 v14, 1
    s_mov_b32 s16, s14
    s_mov_b32 s17, s15
    s_mov_b32 s18, {NLINES*128}
    s_mov_b32 s19, 0x20000
    s_add_u32 s20, s14, {TABSTR}
    s_addc_u32 s21, s15, 0
    s_mov_b32 s22, {NLINES*128}
    s_mov_b32 s23, 0x20000
    s_mov_b32 s28, s8
    s_mov_b32 s29, s9
    s_mov_b32 s30, {N*128}
    s_mov_b32 s31, 0x20000
    s_mov_b32 s32, s10
    s_mov_b32 s33, s11
    s_mov_b32 s34, {N*2}
    s_mov_b32 s35, 0x20000
    s_add_u32 s{sSYNC}, s14, {WS_SYNC}
    s_addc_u32 s{sSYNC+1}, s15, 0
    s_mov_b32 s58, 0x01010101
    s_mov_b32 s59, 0x01010101
    s_mov_b32 s63, 0xffff
    s_mov_b32 s{sDEAD}, 0
    s_waitcnt vmcnt(0)
    v_and_b32 v15, 0xffff, v11
    v_lshrrev_b32 v11, 16, v11
    v_add_lshl_u32 v9, v9, v15, 2
    v_sub_u32 v{vREM}, v11, v13''')
    for r in range(NR):
        a(f'''v_cmpx_lt_i32 vcc, {8*r}, v{vREM}
        s_cbranch_execz K2_LD_DONE
        buffer_load_dwordx4 {vr(vE+4*r,4)}, v9, {SRD_E}, 0 offen offset:{32*r}''')
    a(f'''K2_LD_DONE:
    s_mov_b64 exec, -1
    s_waitcnt lgkmcnt(0)
    s_add_i32 s64, s64, s65
    s_add_i32 s66, s66, s67
    s_add_i32 s64, s64, s68
    s_add_i32 s64, s64, s66
    s_cmp_gt_i32 s64, 0
    s_cselect_b32 s64, 4, 0
    s_xor_b32 s{sSIDE}, s{sSIDE}, s64
    s_and_b32 s{sSIDE}, s{sSIDE}, 4
    s_lshl_b32 s{sSIDE}, s{sSIDE}, 4
    s_barrier
    v_cmp_lt_u32 vcc, {8*NR}, v11
    s_cbranch_vccz K2_LEN_OK
    v_mov_b32 v15, {FLAG}
    ds_write_b32 v15, v14
    K2_LEN_OK:
    s_waitcnt vmcnt(0)''')
    def chain(body, end):
        for r in range(NR):
            for j in range(4):
                a(f'v_cmpx_lt_i32 vcc, {8*r+j}, v{vREM}')
                if j%2==0: a(f's_cbranch_execz {end}')
                body(4*r+j)
        a(f'{end}:\ns_mov_b64 exec, -1')
    chain(lambda i: a(f'v_bfe_u32 v{vKA+i}, v{vE+i}, 16, 12\nds_add_rtn_u32 v{vRK+i}, v{vKA+i}, v14'), 'K2_A_DONE')
    a(f'''s_waitcnt lgkmcnt(0)
    s_barrier
    s_cmp_ge_u32 s{sWAVE}, 4
    s_cbranch_scc1 K2_P2_DONE
    v_cmpx_gt_u32 vcc, 208, v0
    ds_read_b128 v[16:19], v12
    v_mul_u32_u24 v20, {LSTR}, v0
    v_add_u32 v20, {LIST}, v20
    s_waitcnt lgkmcnt(0)
    v_lshl_add_u32 v21, v16, 1, v20
    v_add3_u32 v24, v16, v17, v18
    v_lshl_add_u32 v22, v17, 1, v21
    v_add_u32 v24, v24, v19
    v_lshl_add_u32 v23, v18, 1, v22
    v_min_u32 v25, 63, v24
    ds_write_b128 v12, v[20:23]
    v_sub_u32 v26, 63, v25
    v_lshlrev_b32 v26, 2, v26
    v_lshl_or_b32 v27, v0, 16, v20
    v_lshl_or_b32 v27, v25, 24, v27
    v_cmp_eq_u32 vcc, 63, v25
    s_cbranch_vccz K2_DEG_OK
    v_mov_b32 v15, {FLAG}
    ds_write_b32 v15, v14
    K2_DEG_OK:
    v_cmpx_gt_u32 vcc, {BK}, v0
    ds_add_rtn_u32 v28, v26, v14 offset:{HIST}
    s_mov_b64 exec, -1
    s_waitcnt lgkmcnt(0)
    K2_P2_DONE:
    s_barrier''')
    chain(lambda i: a(f'ds_read_b32 v{vKA+i}, v{vKA+i}'), 'K2_B_DONE')
    a(f'''s_cmp_ge_u32 s{sWAVE}, 4
    s_cbranch_scc1 K2_P3_SKIP
    v_lshlrev_b32 v29, 2, v{vLANE}
    ds_read_b32 v30, v29 offset:{HIST}
    s_waitcnt lgkmcnt(0)
    v_mov_b32 v31, v30''')
    wave_scan(a,31)
    a(f'''v_sub_u32 v31, v31, v30
    ds_bpermute_b32 v31, v26, v31
    v_cmp_gt_u32 vcc, {BK}, v0
    s_waitcnt lgkmcnt(0)
    v_add_u32 v31, v31, v28
    v_cndmask_b32 v31, v0, v31, vcc
    v_lshlrev_b32 v31, 2, v31
    v_cmpx_gt_u32 vcc, 208, v0
    ds_write_b32 v31, v27 offset:{NODEOF}
    s_mov_b64 exec, -1
    K2_P3_SKIP:
    v_mov_b32 v15, s{sSIDE}
    s_waitcnt lgkmcnt(0)''')
    chain(lambda i: a(f'''v_lshrrev_b32 v16, {DUALBIT-6}, v{vE+i}
        v_lshl_add_u32 v{vKA+i}, v{vRK+i}, 1, v{vKA+i}
        v_bitop3_b32 v16, v{vE+i}, v16, v15 bitop3:0x78
        ds_write_b16 v{vKA+i}, v16'''), 'K2_C_DONE')
    for w in range(8):
        sl=SLICES[w]; a(f's_mov_b32 s{64+w}, {sl[0]|sl[1]<<8|sl[2]<<16|sl[3]<<24:#x}')
    a(f'''s_mov_b32 m0, s{sWAVE}
    v_lshrrev_b32 v8, 3, v{vLANE}
    s_movrels_b32 s54, s64
    v_lshlrev_b32 v9, 2, v8
    v_add_u32 v9, {NODEOF}, v9''')
    for s in range(4):
        a(f's_bfe_u32 s{64+s}, s54, {8*s|8<<16:#x}\ns_lshl_b32 s{64+s}, s{64+s}, 5\nv_add_u32 v{16+s}, s{64+s}, v9')
    a(f'''v_mov_b32 v15, {FLAG}
    s_waitcnt lgkmcnt(0)
    s_barrier''')
    for s in range(4): a(f'ds_read_b32 v{vDL+s}, v{16+s}')
    a(f'''ds_read_b32 v15, v15
    s_lshl_b32 s54, s{sWAVE}, 8
    s_add_u32 s54, s54, {SMAP}
    v_and_b32 v{vSUB}, 7, v{vLANE}
    v_lshlrev_b32 v{vSUB}, 4, v{vSUB}
    v_mov_b32 v{vCLO}, 0x3f80
    v_mov_b32 v{vCHI}, 0x3f800000
    s_waitcnt lgkmcnt(0)''')
    for s in range(4): a(f'v_readfirstlane_b32 s{68+s}, v{vDL+s}')
    a(f'v_readfirstlane_b32 s{sSLOW}, v15')
    for s in range(4): a(f's_lshr_b32 s{68+s}, s{68+s}, 24')
    a(f'''s_add_u32 s72, s68, s69
    s_add_u32 s73, s72, s70
    s_add_u32 s{sT}, s73, s71
    s_cmp_gt_u32 s{sT}, 64
    s_cselect_b32 s{sSLOW}, 1, s{sSLOW}
    v_cmp_le_u32 s[74:75], s68, v{vLANE}
    v_cmp_le_u32 s[76:77], s72, v{vLANE}
    v_cmp_le_u32 s[78:79], s73, v{vLANE}
    v_cmp_le_u32 s[80:81], s{sT}, v{vLANE}''')
    for s in range(4):
        a(f's_or_b32 s{64+s}, s{64+s}, {s<<12}')
    a(f'''v_mov_b32 v16, 0
    v_mov_b32 v17, s68
    v_mov_b32 v18, s64''')
    for s,(m,c) in enumerate((('s[74:75]','s68'),('s[76:77]','s72'),('s[78:79]','s73')),1):
        a(f'''s_mov_b64 exec, {m}
        v_mov_b32 v16, {c}
        v_mov_b32 v17, s{68+s}
        v_mov_b32 v18, s{64+s}''')
    a(f'''s_mov_b64 exec, -1
    v_sub_u32 v16, v{vLANE}, v16
    v_cvt_f32_u32 v17, v17
    v_cvt_f32_u32 v19, v16
    v_rcp_f32 v17, v17
    v_add_f32 v19, 0.5, v19
    v_lshlrev_b32 v16, 1, v16
    v_mul_f32 v19, v19, v17
    v_mul_f32 v19, 0x41000000, v19
    v_cvt_u32_f32 v19, v19
    v_min_u32 v19, 7, v19
    v_lshl_or_b32 v18, v18, 16, v16
    v_mov_b32 v20, v{vLANE}
    s_mov_b64 exec, s[80:81]
    v_mov_b32 v19, 15
    v_mov_b32 v18, 128
    s_mov_b64 exec, -1
    s_mov_b32 s55, 0''')
    for c in range(8):
        a(f'''v_cmp_eq_u32 s[74:75], {c}, v19
        v_mov_b32 v21, s55
        s_bcnt1_i32_b64 s56, s[74:75]
        v_mbcnt_lo_u32_b32 v21, s74, v21
        v_mbcnt_hi_u32_b32 v21, s75, v21
        s_add_u32 s55, s55, s56
        v_cndmask_b32 v20, v20, v21, s[74:75]''')
    a(f'''v_lshl_add_u32 v20, v20, 2, s54
    ds_write_b32 v20, v18
    v_lshl_add_u32 v21, v{vLANE}, 2, s54
    v_and_b32 v22, 3, v{vLANE}
    v_lshl_add_u32 v22, v22, 4, s54
    s_waitcnt lgkmcnt(0)''')
    vV=44; vL=60
    for c in range(4): a(f'ds_read_b128 {vr(vV+4*c,4)}, v22 offset:{64*c}')
    a('ds_read_b32 v21, v21')
    for c in range(4):
        a(f's_waitcnt lgkmcnt({min(15,4-c+4*c)})')
        for r in range(4):
            i=4*c+r
            a(f'''v_bfe_u32 v{vL+i}, v{vV+i}, 16, 12
            v_add_u32 v{vL+i}, v{vL+i}, v9
            ds_read_u16 v{vL+i}, v{vL+i}''')
    for c in range(4):
        a(f's_waitcnt lgkmcnt(12)')
        for r in range(4):
            i=4*c+r
            a(f'''v_add_u32_sdwa v{vL+i}, v{vL+i}, v{vV+i} dst_sel:DWORD dst_unused:UNUSED_PAD src0_sel:DWORD src1_sel:WORD_0
            ds_read_u16 v{vEO+i}, v{vL+i}''')
    a(f'''v_and_b32 v22, {1<<28}, v21
    v_and_b32 v23, {2<<28}, v21
    v_cmp_ne_u32 s[{sM1}:{sM1+1}], 0, v22
    v_cmp_ne_u32 s[{sM2}:{sM2+1}], 0, v23''')
    for c in range(4):
        a(f's_waitcnt lgkmcnt({12-4*c})')
        for r in range(4): a(f'v_lshlrev_b32 v{vEO+4*c+r}, 7, v{vEO+4*c+r}')
    def issue(t):
        r=(t//16)*4+t%4; J=(t//4)%4
        a(f'v_add_u32_dpp v{vADDR}, v{vEO+r}, v{vSUB} quad_perm:[{J},{J},{J},{J}] {ALL}')
        a(f'buffer_load_dwordx4 {vr(vD+4*(t%W),4)}, v{vADDR}, {SRD_G}, 0 offen sc1')
    a(f'''s_mov_b32 s54, {DL-1}
    s_sub_u32 s55, {N}, s{sN0}
    s_min_u32 s55, s55, {BK}
    s_mov_b32 s56, {OOB}
    v_mov_b32 v{vT+4}, s56''')
    for s in range(4):
        a(f'''v_bfe_u32 v{vDL+s}, v{vDL+s}, 16, 8
        v_cmp_gt_u32 s[74:75], s55, v{vDL+s}
        v_add_u32 v{vT}, s{sN0}, v{vDL+s}
        v_lshlrev_b32 v{vT+1}, 1, v{vT}
        v_lshl_add_u32 v{vROW+s}, v{vT}, 7, v{vSUB}
        v_cndmask_b32 v{vT+1}, v{vT+4}, v{vT+1}, s[74:75]
        v_mov_b32 v{vDIS+s}, 0
        v_cndmask_b32 v{vROW+s}, v{vT+4}, v{vROW+s}, s[74:75]
        buffer_load_short_d16_hi v{vDIS+s}, v{vT+1}, {SRD_D}, 0 offen''')
        line0(a,vST+s,vT,vT+2,vT+3,'s54',f's[{sDUAL+2*s}:{sDUAL+2*s+1}]')
        a(f'''v_lshl_add_u32 v{vST+s}, v{vST+s}, 7, v{vSUB}
        v_cndmask_b32 v{vST+s}, v{vT+4}, v{vST+s}, s[74:75]''')
    a(f'''v_lshrrev_b32 v{vT}, 3, v{vLANE}
    v_and_b32 v{vT+1}, 1, v{vT}
    v_mul_u32_u24 v{vT+1}, 0x70, v{vT+1}
    v_xor_b32 v{vLDS}, v{vSUB}, v{vT+1}
    v_lshl_or_b32 v{vLDS}, v{vT}, 10, v{vLDS}
    s_lshl_b32 s54, s{sWAVE}, 14
    v_or_b32 v{vLDS}, s54, v{vLDS}
    s_mul_i32 s54, s{sWAVE}, 768
    s_add_u32 s54, s54, {STAT}
    v_lshl_add_u32 v{vSTAT}, v{vT}, 5, s54
    s_mov_b32 s{sK}, 1
    s_barrier''')
    a('K2_HOP:')
    a(f's_cmp_lg_u32 s{sSLOW}, 0\ns_cbranch_scc1 K2_SLOW')
    for t in range(W): issue(t)
    for i in range(32): a(f'v_mov_b32 v{vACC+i}, 0')
    tails=[]
    def acc(s,d):
        a(f's_waitcnt vmcnt({W-1})')
        for j in range(8): a(f'v_dot2c_f32_bf16 v{vACC+8*s+j}, v{vCHI if j&1 else vCLO}, v{d+j//2}')
    for t in range(64):
        d=vD+4*(t%W)
        a(f'''s_bitcmp1_b32 s{sM2+t//32}, {t%32}
        s_cbranch_scc1 HC_{t}
        s_bitcmp1_b32 s{sM1+t//32}, {t%32}
        s_cbranch_scc1 HB_{t}''')
        acc(0,d)
        a(f'HJ_{t}:')
        if t+W<64:
            a(f's_cmp_gt_u32 s{sT}, {t+W}\ns_cbranch_scc0 HK_{t}')
            issue(t+W)
            a(f'HN_{t}:')
        elif t<63:
            a(f's_waitcnt vmcnt(0)\ns_cmp_gt_u32 s{sT}, {t+1}\ns_cbranch_scc0 K2_FIN')
    a('K2_FIN:')
    a(f's_cmp_eq_u32 s{sK}, 7\ns_cbranch_scc1 K2_LAST')
    a(f's_cmp_lg_u32 s{sK}, 1\ns_cbranch_scc1 K2_HAVE_D2')
    for s in range(4): a(f'v_mul_f32 v{vD2+s}, v{vDIS+s}, v{vDIS+s}')
    a('K2_HAVE_D2:')
    def publish(s):
        tp=(vD,vD+8,vT,vT+8)[s]
        for j in range(8): a(f'v_mul_f32 v{tp+j}, v{vACC+8*s+j}, v{vD2+s}')
        for j in range(4): a(f'v_cvt_pk_bf16_f32 v{tp+j}, v{tp+2*j}, v{tp+2*j+1}')
        a(f'''v_xor_b32 v{tp+4}, 0x2000, v{vST+s}
        buffer_store_dwordx4 {vr(tp,4)}, v{vST+s}, {SRD_S}, 0 offen sc1
        s_mov_b64 exec, s[{sDUAL+2*s}:{sDUAL+2*s+1}]
        s_cbranch_execz PUB_{s}
        buffer_store_dwordx4 {vr(tp,4)}, v{tp+4}, {SRD_S}, 0 offen sc1
        PUB_{s}:
        s_mov_b64 exec, -1''')
    for s in range(3): publish(s)
    a(f's_cmp_lg_u32 s{sWAVE}, 7\ns_cbranch_scc1 K2_PUB_DONE')
    publish(3)
    a('K2_PUB_DONE:')
    a(f's_cmp_lg_u32 s{sK}, 1\ns_cbranch_scc1 K2_NOX')
    vX=vC; vXR=vC+32
    for s in range(4): a(f'buffer_load_dwordx4 {vr(vXR+4*s,4)}, v{vROW+s}, {SRD_X}, 0 offen')
    a('s_waitcnt vmcnt(0)')
    for s in range(4):
        for j in range(4):
            a(f'v_lshlrev_b32 v{vX+8*s+2*j}, 16, v{vXR+4*s+j}\nv_and_b32 v{vX+8*s+2*j+1}, 0xffff0000, v{vXR+4*s+j}')
    set_tok_index(a,'0')
    emit_tokens(a,vX,False,'X')
    a('K2_NOX:\nK2_LAST:')
    set_tok_index(a,f's{sK}')
    emit_tokens(a,vACC,True,'H')
    a(f'''s_cmp_eq_u32 s{sK}, 7
    s_cbranch_scc1 K2_FINAL''')
    if setup:
        a(f's_cmp_lg_u32 s{sK}, 5\ns_cbranch_scc1 K2_NOSETUP')
        setup(a)
        a('K2_NOSETUP:')
    a(f'''s_waitcnt vmcnt(0)
    s_barrier
    s_cmp_lg_u32 s{sWAVE}, 0
    s_cbranch_scc1 K2_SYNCED
    s_lshl_b32 s54, s{sK}, 12
    s_and_b32 s55, s2, 15
    s_lshl_b32 s55, s55, 7
    s_add_u32 s55, s55, s54
    v_mov_b32 v{vT}, s55
    v_mov_b32 v{vT+1}, 1
    v_lshl_add_u32 v{vT+3}, v{vLANE}, 7, s54
    s_mov_b64 exec, 1
    global_atomic_add v{vT+2}, v{vT}, v{vT+1}, s[{sSYNC}:{sSYNC+1}] sc0
    s_mov_b32 s56, 0
    s_waitcnt vmcnt(0)
    v_cmp_eq_u32 vcc, 15, v{vT+2}
    s_cbranch_vccz K2_NOTLAST
    global_store_dword v{vT}, v{vT+1}, s[{sSYNC}:{sSYNC+1}] offset:2048 sc1
    K2_NOTLAST:
    s_mov_b64 exec, 0xffff
    K2_POLL:
    global_load_dword v{vT+2}, v{vT+3}, s[{sSYNC}:{sSYNC+1}] offset:2048 sc1
    s_add_u32 s{sDEAD}, s{sDEAD}, 1
    s_cmp_gt_u32 s{sDEAD}, 0x1000000
    s_cbranch_scc1 K2_POLLED
    s_waitcnt vmcnt(0)
    v_cmp_ne_u32 vcc, 1, v{vT+2}
    s_cbranch_vccnz K2_POLL
    K2_POLLED:
    s_waitcnt vmcnt(0)
    s_mov_b64 exec, -1
    K2_SYNCED:
    s_add_u32 s16, s16, {TABSTR}
    s_addc_u32 s17, s17, 0
    s_add_u32 s20, s20, {TABSTR}
    s_addc_u32 s21, s21, 0
    s_add_u32 s{sK}, s{sK}, 1
    s_barrier
    s_branch K2_HOP''')
    for t in range(64):
        d=vD+4*(t%W)
        a(f'HB_{t}:'); acc(1,d); a(f's_branch HJ_{t}')
        a(f'HC_{t}:\ns_bitcmp1_b32 s{sM1+t//32}, {t%32}\ns_cbranch_scc1 HD_{t}'); acc(2,d); a(f's_branch HJ_{t}')
        if t+W<64:
            a(f'''HK_{t}:
            s_waitcnt vmcnt(0)
            s_cmp_gt_u32 s{sT}, {t+1}
            s_cbranch_scc0 K2_FIN
            s_branch HN_{t}''')
    for t in range(64):
        d=vD+4*(t%W)
        a(f'HD_{t}:'); acc(3,d); a(f's_branch HJ_{t}')
    a('K2_SLOW:')
    for i in range(32): a(f'v_mov_b32 v{vACC+i}, 0')
    a(f'''s_mov_b32 s64, 0
    SL_SEG:
    s_lshl_b32 s54, s64, 10
    s_lshl_b32 s55, s{sB}, 2
    s_add_u32 s54, s54, s55
    s_add_u32 s54, s54, {WS_OFF-WS_ENT}
    s_buffer_load_dword s65, {SRD_E}, s54
    s_mul_i32 s66, s64, {CH}
    s_waitcnt lgkmcnt(0)
    s_and_b32 s67, s65, 0xffff
    s_lshr_b32 s65, s65, 16
    s_add_u32 s66, s66, s67
    s_lshl_b32 s66, s66, 2
    SL_EDGE:
    s_cmp_eq_u32 s65, 0
    s_cbranch_scc1 SL_NEXT
    s_buffer_load_dword s67, {SRD_E}, s66
    s_sub_u32 s65, s65, 1
    s_add_u32 s66, s66, 4
    s_waitcnt lgkmcnt(0)
    s_bfe_u32 s68, s67, {20|8<<16:#x}
    s_and_b32 s67, s67, 0xffff
    s_lshl_b32 s67, s67, 7''')
    for s in range(4):
        a(f'''v_cmp_eq_u32 vcc, s68, v{vDL+s}
        s_cbranch_vccz SL_N{s}
        v_add_u32 v{vADDR}, s67, v{vSUB}
        buffer_load_dwordx4 {vr(vD,4)}, v{vADDR}, {SRD_G}, 0 offen sc1
        s_mov_b64 exec, vcc
        s_waitcnt vmcnt(0)''')
        for j in range(8): a(f'v_dot2c_f32_bf16 v{vACC+8*s+j}, v{vCHI if j&1 else vCLO}, v{vD+j//2}')
        a(f's_mov_b64 exec, -1\ns_branch SL_EDGE\nSL_N{s}:')
    a(f'''s_branch SL_EDGE
    SL_NEXT:
    s_add_u32 s64, s64, 1
    s_cmp_lt_u32 s64, {NCH}
    s_cbranch_scc1 SL_SEG
    s_waitcnt vmcnt(0)
    s_branch K2_FIN''')
    a('K2_FINAL:')
    if dbg=='tokens':
        a(f'''s_waitcnt lgkmcnt(0)
        s_barrier
        s_mul_i32 s54, s{sB}, 0x40000
        s_add_u32 s54, s54, {WS_DBG}
        s_add_u32 s54, s14, s54
        s_addc_u32 s55, s15, 0
        v_lshlrev_b32 v{vT}, 4, v0''')
        for i in range(19):
            a(f'''ds_read_b128 {vr(vD,4)}, v{vT}
            s_waitcnt lgkmcnt(0)
            global_store_dwordx4 v{vT}, {vr(vD,4)}, s[54:55]
            s_waitcnt vmcnt(0)
            v_add_u32 v{vT}, 8192, v{vT}''')
        for i in range(8):
            a(f'global_store_dwordx4 v{vT}, {vr(vTOK+4*i,4)}, s[54:55]\nv_add_u32 v{vT}, 8192, v{vT}')
        a(f'global_store_dwordx4 v{vT}, {vr(vROW,4)}, s[54:55]')
    if final: final(a)
    a('K2_END:\ns_endpgm')
    return (name,a.text(),256,96,512), LDS_TOTAL
if __name__=='__main__':
    import k1,sys
    k,lds=gen_k2(dbg='tokens')
    build_module([k1.gen_k1()[0],k],96,'k12dbg')
    print('lds',lds)
```

```python
import re
def regs(tok):
    tok=tok.strip()
    m=re.fullmatch(r'-?v\[(\d+):(\d+)\]',tok)
    if m: return list(range(int(m.group(1)),int(m.group(2))+1))
    m=re.fullmatch(r'-?v(\d+)',tok)
    if m: return [int(m.group(1))]
    return []
TRANS=('v_exp_f32','v_rcp_f32','v_rsq_f32','v_sqrt_f32','v_log_f32')
class Op:
    def __init__(s,text,mem=None,prio=0):
        s.text=text.strip(); s.mem=mem; s.bias=prio
        mn,_,rest=s.text.partition(' '); s.mn=mn
        ops=[o.strip().split(' ')[0] for o in re.split(r',(?![^\[]*\])',rest)]
        s.srcC=[]
        if mn.startswith('v_mfma'):
            s.kind='mfma'; s.w=regs(ops[0]); s.ab=regs(ops[1])+regs(ops[2]); s.srcC=regs(ops[3]); s.r=s.ab+s.srcC
        elif mn.startswith('ds_write'):
            s.kind='dsw'; s.w=[]; s.r=sum((regs(o) for o in ops),[])
        elif mn.startswith('ds_'):
            s.kind='dsr'; s.w=regs(ops[0]); s.r=sum((regs(o) for o in ops[1:]),[])
        elif mn.startswith('buffer_store'):
            s.kind='st'; s.w=[]; s.r=sum((regs(o) for o in ops),[])
        elif mn.startswith('v_permlane'):
            s.kind='perm'; s.w=regs(ops[0])+regs(ops[1]); s.r=list(s.w)
        elif mn.startswith('v_'):
            s.kind='trans' if mn in TRANS else ('dpp' if mn.endswith('_dpp') else 'valu')
            s.w=regs(ops[0]); s.r=sum((regs(o) for o in ops[1:]),[])
            if mn.startswith('v_fmac') or s.kind=='dpp': s.r+=s.w
        else: raise ValueError(text)
        s.issue={'mfma':8,'trans':8,'perm':8}.get(s.kind,4)
ISV=('valu','trans','dpp','perm')
def wait_states(p,c):
    n=0; pw=set(p.w)
    if p.kind in ISV:
        if pw&set(c.r):
            if c.kind=='mfma': n=max(n,2)
            if c.kind in('dpp','perm'): n=max(n,2)
            if p.kind=='trans' and c.kind!='trans': n=max(n,1)
    if p.kind=='mfma':
        if c.kind=='mfma':
            if pw&set(c.ab): n=max(n,8)
            if pw&set(c.srcC) and p.w!=c.srcC: n=max(n,6)
            if pw&set(c.w) and p.w!=c.srcC: n=max(n,6)
        elif pw&(set(c.r)|set(c.w)): n=max(n,8)
        if c.kind!='mfma' and set(p.srcC)&set(c.w): n=max(n,3)
    if p.kind=='st' and c.kind in ISV and set(p.r)&set(c.w): n=max(n,2)
    return n
def latency(p,c,raw):
    if not raw: return max(p.issue,4*wait_states(p,c))
    if p.kind=='dsr': return 110
    if p.kind=='mfma':
        if c.kind=='mfma' and p.w==c.srcC and not set(p.w)&set(c.ab): return 16
        return 44
    if p.kind in('trans','perm'): return 16
    return max(8,4+4*wait_states(p,c))
def schedule(ops):
    n=len(ops); succ=[[] for _ in ops]; npred=[0]*n
    for j in range(n):
        c=ops[j]; cr=set(c.r); cw=set(c.w)
        for i in range(j):
            p=ops[i]; raw=bool(set(p.w)&cr); other=bool(set(p.w)&cw or set(p.r)&cw)
            memdep = p.mem is not None and c.mem is not None and set(p.mem)&set(c.mem) and ('dsw' in (p.kind,c.kind))
            if raw or other or memdep:
                l=latency(p,c,raw) if (raw or other) else 4
                succ[i].append((j,l)); npred[j]+=1
    cp=[0]*n
    for i in range(n-1,-1,-1): cp[i]=ops[i].issue+max([0]+[l+cp[j]-ops[i].issue for j,l in succ[i]])+ops[i].bias
    ready=[0]*n; done=[False]*n; out=[]; t=0; mf=0
    avail=[i for i in range(n) if npred[i]==0]
    while avail:
        def start(i): return max(ready[i],t, mf if ops[i].kind=='mfma' else 0)
        now=[i for i in avail if start(i)<=t]
        i=max(now,key=lambda i:(cp[i],-i)) if now else min(avail,key=lambda i:(start(i),-cp[i]))
        st=start(i); t=st+ops[i].issue
        if ops[i].kind=='mfma': mf=st+16
        avail.remove(i); out.append(ops[i])
        for j,l in succ[i]:
            ready[j]=max(ready[j],st+l); npred[j]-=1
            if npred[j]==0: avail.append(j)
    return out,t
def emit(ops, carry_in=()):
    lines=[]; hist=[]
    fl=list(carry_in)
    for c in ops:
        need=-1
        touched=set(c.r)|set(c.w)
        for k,p in enumerate(fl):
            if p.kind=='dsr' and set(p.w)&touched: need=k
        if need>=0:
            cnt=len(fl)-1-need
            cnt=min(cnt,14); lines.append(f's_waitcnt lgkmcnt({cnt})'); hist.append((None,1)); fl=fl[len(fl)-cnt:] if cnt else []
        dist=0; pad=0
        for p,stt in reversed(hist):
            if p is not None: pad=max(pad,wait_states(p,c)-dist)
            dist+=stt
            if dist>=10: break
        if pad>0: lines.append(f's_nop {pad-1}'); hist.append((None,pad))
        lines.append(c.text); hist.append((c,1))
        if c.kind in('dsr','dsw'): fl.append(c)
    return lines,fl
```

```python
import sys
from common import *
import k1,k2,final
HEAD=open('standalone__hybrid_graph_tf_nagphormer__graph.s.ref').read().split('; Override launch')[0]
def build(path):
    ka,l1=k1.gen_k1(); kb,l2=k2.gen_k2(final=final.final,setup=final.setup)
    s=HEAD+f'; @launch kernel=prep_kernel grid=(256,1,1) block=({ka[4]},1,1) lds={l1}\n; @launch kernel=main_kernel grid=(256,1,1) block=({kb[4]},1,1) lds={l2}\n'
    s+='.amdgcn_target "amdgcn-amd-amdhsa--gfx950"\n.text\n'
    for n,b,vg,sg,wg in (ka,kb): s+=kernel_head(n)+b
    s+='.section .rodata,"a"\n'
    for n,b,vg,sg,wg in (ka,kb): s+=kernel_desc(n,vg,sg,96)
    open(path,'w').write(s)
    build_module([ka,kb],96,'full')
if __name__=='__main__':
    build(sys.argv[1] if len(sys.argv)>1 else 'standalone__hybrid_graph_tf_nagphormer__graph.s')
```

```python
import sys
from common import *
import k1,k2,final
HEAD=open('standalone__hybrid_graph_tf_nagphormer__graph.s.ref').read().split('; Override launch')[0]
def build(path):
    ka,l1=k1.gen_k1(); kb,l2=k2.gen_k2(final=final.final,setup=final.setup)
    s=HEAD+f'; @launch kernel=prep_kernel grid=(256,1,1) block=({ka[4]},1,1) lds={l1}\n; @launch kernel=main_kernel grid=(256,1,1) block=({kb[4]},1,1) lds={l2}\n'
    s+='.amdgcn_target "amdgcn-amd-amdhsa--gfx950"\n.text\n'
    for n,b,vg,sg,wg in (ka,kb): s+=kernel_head(n)+b
    s+='.section .rodata,"a"\n'
    for n,b,vg,sg,wg in (ka,kb): s+=kernel_desc(n,vg,sg,96)
    open(path,'w').write(s)
    build_module([ka,kb],96,'full')
    k2.DIAG=True
    kb,l2=k2.gen_k2(final=final.final,setup=final.setup)
    build_module([ka,kb],96,'diag')
    k2.DIAG=False
if __name__=='__main__':
    build(sys.argv[1] if len(sys.argv)>1 else 'standalone__hybrid_graph_tf_nagphormer__graph.s')
```

```python
from common import *
W=5
SLICES=[(0,21,23,25),(6,7,16,25),(2,9,20,25),(1,15,19,25),(4,12,13,25),(8,10,11,25),(3,5,22,25),(14,17,18,24)]
CNT=0; HIST=3328; FLAG=3584; NODEOF=3712; SMAP=4608; LIST=8192; LSTR=132
STAT=139264; ASCR=152064; MDL=152576; LDS_TOTAL=156672
OOB=0x7f000000
vLANE=1; vSUB=2; vADDR=3; vLDS=4; vSTAT=5; vCLO=6; vCHI=7
vST=8; vROW=12; vDIS=16; vD2=20; vDL=24; vEO=28; vACC=44; vD=76; vTOK=100; vT=132; vC=176
sWAVE=3; sB=4; sN0=5; sK=6; sT=7
SRD_G='s[16:19]'; SRD_S='s[20:23]'; SRD_E='s[24:27]'; SRD_X='s[28:31]'; SRD_D='s[32:35]'
sSYNC=36; sM1=38; sM2=40; sDUAL=42; sSIDE=50; sSLOW=51; sDEAD=52
NR=5
EPS=1e-5

def stats_ops(av, s, tmp, scale, d2, tokdst, ldsoff, sK90, sKmask):
    t0,t1,t2,t3=tmp,tmp+1,tmp+2,tmp+3
    o=[]
    o+= [f'v_add_f32 v{t0}, v{av}, v{av+1}', f'v_add_f32 v{t1}, v{av+2}, v{av+3}', f'v_add_f32 v{t2}, v{av+4}, v{av+5}', f'v_add_f32 v{t3}, v{av+6}, v{av+7}',
         f'v_add_f32 v{t0}, v{t0}, v{t1}', f'v_add_f32 v{t2}, v{t2}, v{t3}', f'v_add_f32 v{t0}, v{t0}, v{t2}']
    red=lambda t:[f'DPP v_add_f32_dpp v{t}, v{t}, v{t} quad_perm:[1,0,3,2] {ALL}', f'DPP v_add_f32_dpp v{t}, v{t}, v{t} quad_perm:[2,3,0,1] {ALL}', f'DPP v_add_f32_dpp v{t}, v{t}, v{t} row_half_mirror {ALL}']
    o+=red(t0)
    o+=[f'v_mul_f32 v{t0}, {fbits(1/64)}, v{t0}']
    o+=[f'v_sub_f32 v{av+i}, v{av+i}, v{t0}' for i in range(8)]
    o+=[f'v_mul_f32 v{t1}, v{av}, v{av}', f'v_mul_f32 v{t2}, v{av+1}, v{av+1}']
    o+=[f'v_fmac_f32 v{t1+(i&1)}, v{av+i}, v{av+i}' for i in range(2,8)]
    o+=[f'v_add_f32 v{t1}, v{t1}, v{t2}']
    o+=red(t1)
    if d2 is not None: o+=[f'v_mul_f32 v{t1}, v{t1}, v{d2}', f'v_mul_f32 v{t0}, v{t0}, v{scale}']
    o+=[f'v_mov_b32 v{t2}, {fbits(EPS)}', f'v_fmac_f32 v{t2}, {fbits(1/64)}, v{t1}', f'v_sqrt_f32 v{t1}, v{t2}',
        f'TRN v_cvt_pk_bf16_f32 v{t1}, v{t1}, v{t1}', f'v_and_b32 v{t2}, 0xffff0000, v{t1}', f'v_rcp_f32 v{t2}, v{t2}',
        f'v_and_b32 v{t1}, {sKmask}, v{t1}']
    if scale is not None: o+=[f'v_mul_f32 v{t2}, v{t2}, v{scale}']
    o+=[f'v_mul_f32 v{av+i}, v{av+i}, v{t2}' for i in range(8)]
    o+=[f'v_cvt_pk_bf16_f32 v{tokdst+i}, v{av+2*i}, v{av+2*i+1}' for i in range(4)]
    return o
def emit_ops(a, ops, solo):
    for op in ops:
        if op.startswith('DPP '):
            if solo: a('s_nop 1')
            op=op[4:]
        elif op.startswith('TRN '):
            if solo: a('s_nop 0')
            op=op[4:]
        a(op)

def emit_tokens(a, src, scaled, tag):
    for i in range(28): a(f'v_mov_b32 v{vTOK+i}, v{vTOK+4+i}')
    tp=vT+16
    dst=[src, src+8, vTOK+28]
    ls=[stats_ops(src+8*s, s, tp+4*s, vDIS+s if scaled else None, vD2+s if scaled else None, dst[s], 0,'s60','s61') for s in range(3)]
    emit_ops(a, interleave(ls), False)
    a(f'''v_xor_b32 v{vADDR}, s60, v{vLDS}
    v_add_u32 v{tp+3}, s62, v{vSTAT}
    ds_write_b128 v{vADDR}, {vr(src,4)}
    ds_write_b128 v{vADDR}, {vr(src+8,4)} offset:8192
    s_mov_b64 exec, s[58:59]''')
    for s in range(3): a(f'ds_write2st64_b32 v{tp+3}, v{tp+4*s}, v{tp+4*s+1} offset0:{s} offset1:{25+s}')
    a(f'''s_mov_b64 exec, -1
    s_cmp_lg_u32 s{sWAVE}, 7
    s_cbranch_scc1 TOK_DONE_{tag}''')
    emit_ops(a, stats_ops(src+24, 3, tp+4, vDIS+3 if scaled else None, vD2+3 if scaled else None, src+24, 0,'s60','s61'), True)
    a(f'''ds_write_b128 v{vADDR}, {vr(src+24,4)} offset:16384
    s_mov_b64 exec, s[58:59]
    ds_write2st64_b32 v{tp+3}, v{tp+4}, v{tp+5} offset0:3 offset1:28
    s_mov_b64 exec, -1
    TOK_DONE_{tag}:''')
def set_tok_index(a, k):
    a(f'''s_mul_i32 s60, {k}, 0x90
    s_bitcmp1_b32 s60, 4
    s_cselect_b32 s61, 0xffff0000, s63
    s_lshl_b32 s62, {k}, 2''')

DIAG=False
def stamp(a):
    if DIAG: a('''s_memrealtime s[84:85]
    s_waitcnt lgkmcnt(0)
    v_writelane_b32 v171, s84, m0
    s_add_u32 m0, m0, 1''')
def stampc(a):
    if DIAG: a('''s_memtime s[84:85]
    s_waitcnt lgkmcnt(0)
    v_writelane_b32 v171, s84, m0
    s_add_u32 m0, m0, 1''')
def gen_k2(name='main_kernel', dbg=None, final=None, setup=None):
    a=Asm()
    vE=44; vKA=64; vRK=84; vREM=104
    a('s_cmp_ge_u32 s2, 256\ns_cbranch_scc1 K2_EXIT')
    if DIAG: a('s_mov_b32 m0, 0\nv_mov_b32 v171, 0')
    stamp(a)
    a(f'''s_load_dwordx2 s[14:15], s[0:1], 88
    s_load_dwordx2 s[8:9], s[0:1], 0
    s_load_dwordx2 s[10:11], s[0:1], 24
    s_load_dwordx2 s[12:13], s[0:1], 72
    s_getreg_b32 s{sSIDE}, hwreg(HW_REG_XCC_ID)
    s_and_b32 s{sB}, s2, 7
    s_lshl_b32 s{sB}, s{sB}, 5
    s_lshr_b32 s54, s2, 3
    s_add_u32 s{sB}, s{sB}, s54
    s_mul_i32 s{sN0}, s{sB}, {BK}
    v_lshrrev_b32 v8, 6, v0
    v_lshrrev_b32 v9, 1, v0
    v_readfirstlane_b32 s{sWAVE}, v8
    s_lshl_b32 s54, s{sB}, 2
    s_add_u32 s54, s54, {WS_OFF-WS_ENT}
    v_lshl_add_u32 v10, v9, 10, s54
    s_mov_b32 s26, {WS_OFF-WS_ENT+NCH*1024}
    s_mov_b32 s27, 0x20000
    s_waitcnt lgkmcnt(0)
    s_add_u32 s24, s14, {WS_ENT}
    s_addc_u32 s25, s15, 0
    buffer_load_dword v11, v10, {SRD_E}, 0 offen
    s_add_u32 s54, s14, {WS_VOTE}
    s_addc_u32 s55, s15, 0
    s_load_dwordx8 s[64:71], s[54:55], 0
    v_lshlrev_b32 v12, 4, v0
    v_mov_b32 v16, 0
    v_mov_b32 v17, 0
    v_mov_b32 v18, 0
    v_mov_b32 v19, 0
    v_mov_b32 v20, -1
    v_mov_b32 v21, -1
    v_mov_b32 v22, -1
    v_mov_b32 v23, -1
    ds_write_b128 v12, v[16:19]''')
    for i in range(4): a(f'ds_write_b128 v12, v[20:23] offset:{LIST+8192*i}')
    a(f'''v_and_b32 v{vLANE}, 63, v0
    v_and_b32 v13, 1, v0
    v_mul_u32_u24 v9, {CH}, v9
    v_lshl_add_u32 v9, v13, 2, v9
    v_lshlrev_b32 v13, 2, v13
    v_mov_b32 v14, 1
    s_mov_b32 s16, s14
    s_mov_b32 s17, s15
    s_mov_b32 s18, {NLINES*128}
    s_mov_b32 s19, 0x20000
    s_add_u32 s20, s14, {TABSTR}
    s_addc_u32 s21, s15, 0
    s_mov_b32 s22, {NLINES*128}
    s_mov_b32 s23, 0x20000
    s_mov_b32 s28, s8
    s_mov_b32 s29, s9
    s_mov_b32 s30, {N*128}
    s_mov_b32 s31, 0x20000
    s_mov_b32 s32, s10
    s_mov_b32 s33, s11
    s_mov_b32 s34, {N*2}
    s_mov_b32 s35, 0x20000
    s_add_u32 s{sSYNC}, s14, {WS_SYNC}
    s_addc_u32 s{sSYNC+1}, s15, 0
    s_mov_b32 s58, 0x01010101
    s_mov_b32 s59, 0x01010101
    s_mov_b32 s63, 0xffff
    s_mov_b32 s{sDEAD}, 0
    s_waitcnt vmcnt(0)
    v_and_b32 v15, 0xffff, v11
    v_lshrrev_b32 v11, 16, v11
    v_add_lshl_u32 v9, v9, v15, 2
    v_sub_u32 v{vREM}, v11, v13''')
    stamp(a)
    for r in range(NR):
        a(f'''v_cmpx_lt_i32 vcc, {8*r}, v{vREM}
        s_cbranch_execz K2_LD_DONE
        buffer_load_dwordx4 {vr(vE+4*r,4)}, v9, {SRD_E}, 0 offen offset:{32*r}''')
    a(f'''K2_LD_DONE:
    s_mov_b64 exec, -1
    s_waitcnt lgkmcnt(0)
    s_add_i32 s64, s64, s65
    s_add_i32 s66, s66, s67
    s_add_i32 s64, s64, s68
    s_add_i32 s64, s64, s66
    s_cmp_gt_i32 s64, 0
    s_cselect_b32 s64, 4, 0
    s_xor_b32 s{sSIDE}, s{sSIDE}, s64
    s_and_b32 s{sSIDE}, s{sSIDE}, 4
    s_lshl_b32 s{sSIDE}, s{sSIDE}, 4
    s_barrier
    v_cmp_lt_u32 vcc, {8*NR}, v11
    s_cbranch_vccz K2_LEN_OK
    v_mov_b32 v15, {FLAG}
    ds_write_b32 v15, v14
    K2_LEN_OK:
    s_waitcnt vmcnt(0)''')
    stamp(a)
    def chain(body, end):
        for r in range(NR):
            for j in range(4):
                a(f'v_cmpx_lt_i32 vcc, {8*r+j}, v{vREM}')
                if j%2==0: a(f's_cbranch_execz {end}')
                body(4*r+j)
        a(f'{end}:\ns_mov_b64 exec, -1')
    chain(lambda i: a(f'v_bfe_u32 v{vKA+i}, v{vE+i}, 16, 12\nds_add_rtn_u32 v{vRK+i}, v{vKA+i}, v14'), 'K2_A_DONE')
    a(f'''s_waitcnt lgkmcnt(0)
    s_barrier
    s_cmp_ge_u32 s{sWAVE}, 4
    s_cbranch_scc1 K2_P2_DONE
    v_cmpx_gt_u32 vcc, 208, v0
    ds_read_b128 v[16:19], v12
    v_mul_u32_u24 v20, {LSTR}, v0
    v_add_u32 v20, {LIST}, v20
    s_waitcnt lgkmcnt(0)
    v_lshl_add_u32 v21, v16, 1, v20
    v_add3_u32 v24, v16, v17, v18
    v_lshl_add_u32 v22, v17, 1, v21
    v_add_u32 v24, v24, v19
    v_lshl_add_u32 v23, v18, 1, v22
    v_min_u32 v25, 63, v24
    ds_write_b128 v12, v[20:23]
    v_sub_u32 v26, 63, v25
    v_lshlrev_b32 v26, 2, v26
    v_lshl_or_b32 v27, v0, 16, v20
    v_lshl_or_b32 v27, v25, 24, v27
    v_cmp_eq_u32 vcc, 63, v25
    s_cbranch_vccz K2_DEG_OK
    v_mov_b32 v15, {FLAG}
    ds_write_b32 v15, v14
    K2_DEG_OK:
    v_cmpx_gt_u32 vcc, {BK}, v0
    ds_add_rtn_u32 v28, v26, v14 offset:{HIST}
    s_mov_b64 exec, -1
    s_waitcnt lgkmcnt(0)
    K2_P2_DONE:
    s_barrier''')
    stamp(a)
    chain(lambda i: a(f'ds_read_b32 v{vKA+i}, v{vKA+i}'), 'K2_B_DONE')
    a(f'''s_cmp_ge_u32 s{sWAVE}, 4
    s_cbranch_scc1 K2_P3_SKIP
    v_lshlrev_b32 v29, 2, v{vLANE}
    ds_read_b32 v30, v29 offset:{HIST}
    s_waitcnt lgkmcnt(0)
    v_mov_b32 v31, v30''')
    wave_scan(a,31)
    a(f'''v_sub_u32 v31, v31, v30
    ds_bpermute_b32 v31, v26, v31
    v_cmp_gt_u32 vcc, {BK}, v0
    s_waitcnt lgkmcnt(0)
    v_add_u32 v31, v31, v28
    v_cndmask_b32 v31, v0, v31, vcc
    v_lshlrev_b32 v31, 2, v31
    v_cmpx_gt_u32 vcc, 208, v0
    ds_write_b32 v31, v27 offset:{NODEOF}
    s_mov_b64 exec, -1
    K2_P3_SKIP:
    v_mov_b32 v15, s{sSIDE}
    s_waitcnt lgkmcnt(0)''')
    chain(lambda i: a(f'''v_lshrrev_b32 v16, {DUALBIT-6}, v{vE+i}
        v_lshl_add_u32 v{vKA+i}, v{vRK+i}, 1, v{vKA+i}
        v_bitop3_b32 v16, v{vE+i}, v16, v15 bitop3:0x78
        ds_write_b16 v{vKA+i}, v16'''), 'K2_C_DONE')
    for w in range(8):
        sl=SLICES[w]; a(f's_mov_b32 s{64+w}, {sl[0]|sl[1]<<8|sl[2]<<16|sl[3]<<24:#x}')
    if DIAG: a('s_mov_b32 s86, m0')
    a(f'''s_mov_b32 m0, s{sWAVE}
    v_lshrrev_b32 v8, 3, v{vLANE}
    s_movrels_b32 s54, s64
    {'s_mov_b32 m0, s86' if DIAG else ''}
    v_lshlrev_b32 v9, 2, v8
    v_add_u32 v9, {NODEOF}, v9''')
    for s in range(4):
        a(f's_bfe_u32 s{64+s}, s54, {8*s|8<<16:#x}\ns_lshl_b32 s{64+s}, s{64+s}, 5\nv_add_u32 v{16+s}, s{64+s}, v9')
    a(f'''v_mov_b32 v15, {FLAG}
    s_waitcnt lgkmcnt(0)
    s_barrier''')
    stamp(a)
    for s in range(4): a(f'ds_read_b32 v{vDL+s}, v{16+s}')
    a(f'''ds_read_b32 v15, v15
    s_lshl_b32 s54, s{sWAVE}, 8
    s_add_u32 s54, s54, {SMAP}
    v_and_b32 v{vSUB}, 7, v{vLANE}
    v_lshlrev_b32 v{vSUB}, 4, v{vSUB}
    v_mov_b32 v{vCLO}, 0x3f80
    v_mov_b32 v{vCHI}, 0x3f800000
    s_waitcnt lgkmcnt(0)''')
    for s in range(4): a(f'v_readfirstlane_b32 s{68+s}, v{vDL+s}')
    a(f'v_readfirstlane_b32 s{sSLOW}, v15')
    for s in range(4): a(f's_lshr_b32 s{68+s}, s{68+s}, 24')
    a(f'''s_add_u32 s72, s68, s69
    s_add_u32 s73, s72, s70
    s_add_u32 s{sT}, s73, s71
    s_cmp_gt_u32 s{sT}, 64
    s_cselect_b32 s{sSLOW}, 1, s{sSLOW}
    v_cmp_le_u32 s[74:75], s68, v{vLANE}
    v_cmp_le_u32 s[76:77], s72, v{vLANE}
    v_cmp_le_u32 s[78:79], s73, v{vLANE}
    v_cmp_le_u32 s[80:81], s{sT}, v{vLANE}''')
    for s in range(4):
        a(f's_or_b32 s{64+s}, s{64+s}, {s<<12}')
    a(f'''v_mov_b32 v16, 0
    v_mov_b32 v17, s68
    v_mov_b32 v18, s64''')
    for s,(m,c) in enumerate((('s[74:75]','s68'),('s[76:77]','s72'),('s[78:79]','s73')),1):
        a(f'''s_mov_b64 exec, {m}
        v_mov_b32 v16, {c}
        v_mov_b32 v17, s{68+s}
        v_mov_b32 v18, s{64+s}''')
    a(f'''s_mov_b64 exec, -1
    v_sub_u32 v16, v{vLANE}, v16
    v_cvt_f32_u32 v17, v17
    v_cvt_f32_u32 v19, v16
    v_rcp_f32 v17, v17
    v_add_f32 v19, 0.5, v19
    v_lshlrev_b32 v16, 1, v16
    v_mul_f32 v19, v19, v17
    v_mul_f32 v19, 0x41000000, v19
    v_cvt_u32_f32 v19, v19
    v_min_u32 v19, 7, v19
    v_lshl_or_b32 v18, v18, 16, v16
    v_mov_b32 v20, v{vLANE}
    s_mov_b64 exec, s[80:81]
    v_mov_b32 v19, 15
    v_mov_b32 v18, 128
    s_mov_b64 exec, -1
    s_mov_b32 s55, 0''')
    for c in range(8):
        a(f'''v_cmp_eq_u32 s[74:75], {c}, v19
        v_mov_b32 v21, s55
        s_bcnt1_i32_b64 s56, s[74:75]
        v_mbcnt_lo_u32_b32 v21, s74, v21
        v_mbcnt_hi_u32_b32 v21, s75, v21
        s_add_u32 s55, s55, s56
        v_cndmask_b32 v20, v20, v21, s[74:75]''')
    a(f'''v_lshl_add_u32 v20, v20, 2, s54
    ds_write_b32 v20, v18
    v_lshl_add_u32 v21, v{vLANE}, 2, s54
    v_and_b32 v22, 3, v{vLANE}
    v_lshl_add_u32 v22, v22, 4, s54
    s_waitcnt lgkmcnt(0)''')
    vV=44; vL=60
    for c in range(4): a(f'ds_read_b128 {vr(vV+4*c,4)}, v22 offset:{64*c}')
    a('ds_read_b32 v21, v21')
    for c in range(4):
        a(f's_waitcnt lgkmcnt({min(15,4-c+4*c)})')
        for r in range(4):
            i=4*c+r
            a(f'''v_bfe_u32 v{vL+i}, v{vV+i}, 16, 12
            v_add_u32 v{vL+i}, v{vL+i}, v9
            ds_read_u16 v{vL+i}, v{vL+i}''')
    for c in range(4):
        a(f's_waitcnt lgkmcnt(12)')
        for r in range(4):
            i=4*c+r
            a(f'''v_add_u32_sdwa v{vL+i}, v{vL+i}, v{vV+i} dst_sel:DWORD dst_unused:UNUSED_PAD src0_sel:DWORD src1_sel:WORD_0
            ds_read_u16 v{vEO+i}, v{vL+i}''')
    a(f'''v_and_b32 v22, {1<<28}, v21
    v_and_b32 v23, {2<<28}, v21
    v_cmp_ne_u32 s[{sM1}:{sM1+1}], 0, v22
    v_cmp_ne_u32 s[{sM2}:{sM2+1}], 0, v23''')
    for c in range(4):
        a(f's_waitcnt lgkmcnt({12-4*c})')
        for r in range(4): a(f'v_lshlrev_b32 v{vEO+4*c+r}, 7, v{vEO+4*c+r}')
    def issue(t):
        r=(t//16)*4+t%4; J=(t//4)%4
        a(f'v_add_u32_dpp v{vADDR}, v{vEO+r}, v{vSUB} quad_perm:[{J},{J},{J},{J}] {ALL}')
        a(f'buffer_load_dwordx4 {vr(vD+4*(t%W),4)}, v{vADDR}, {SRD_G}, 0 offen sc1')
    a(f'''s_mov_b32 s54, {DL-1}
    s_sub_u32 s55, {N}, s{sN0}
    s_min_u32 s55, s55, {BK}
    s_mov_b32 s56, {OOB}
    v_mov_b32 v{vT+4}, s56''')
    for s in range(4):
        a(f'''v_bfe_u32 v{vDL+s}, v{vDL+s}, 16, 8
        v_cmp_gt_u32 s[74:75], s55, v{vDL+s}
        v_add_u32 v{vT}, s{sN0}, v{vDL+s}
        v_lshlrev_b32 v{vT+1}, 1, v{vT}
        v_lshl_add_u32 v{vROW+s}, v{vT}, 7, v{vSUB}
        v_cndmask_b32 v{vT+1}, v{vT+4}, v{vT+1}, s[74:75]
        v_mov_b32 v{vDIS+s}, 0
        v_cndmask_b32 v{vROW+s}, v{vT+4}, v{vROW+s}, s[74:75]
        buffer_load_short_d16_hi v{vDIS+s}, v{vT+1}, {SRD_D}, 0 offen''')
        line0(a,vST+s,vT,vT+2,vT+3,'s54',f's[{sDUAL+2*s}:{sDUAL+2*s+1}]')
        a(f'''v_lshl_add_u32 v{vST+s}, v{vST+s}, 7, v{vSUB}
        v_cndmask_b32 v{vST+s}, v{vT+4}, v{vST+s}, s[74:75]''')
    a(f'''v_lshrrev_b32 v{vT}, 3, v{vLANE}
    v_and_b32 v{vT+1}, 1, v{vT}
    v_mul_u32_u24 v{vT+1}, 0x70, v{vT+1}
    v_xor_b32 v{vLDS}, v{vSUB}, v{vT+1}
    v_lshl_or_b32 v{vLDS}, v{vT}, 10, v{vLDS}
    s_lshl_b32 s54, s{sWAVE}, 14
    v_or_b32 v{vLDS}, s54, v{vLDS}
    s_mul_i32 s54, s{sWAVE}, 768
    s_add_u32 s54, s54, {STAT}
    v_lshl_add_u32 v{vSTAT}, v{vT}, 5, s54
    s_mov_b32 s{sK}, 1
    s_barrier''')
    a('K2_HOP:')
    stamp(a)
    a(f's_cmp_lg_u32 s{sSLOW}, 0\ns_cbranch_scc1 K2_SLOW')
    for t in range(W): issue(t)
    for i in range(32): a(f'v_mov_b32 v{vACC+i}, 0')
    tails=[]
    def acc(s,d):
        a(f's_waitcnt vmcnt({W-1})')
        for j in range(8): a(f'v_dot2c_f32_bf16 v{vACC+8*s+j}, v{vCHI if j&1 else vCLO}, v{d+j//2}')
    for t in range(64):
        d=vD+4*(t%W)
        a(f'''s_bitcmp1_b32 s{sM2+t//32}, {t%32}
        s_cbranch_scc1 HC_{t}
        s_bitcmp1_b32 s{sM1+t//32}, {t%32}
        s_cbranch_scc1 HB_{t}''')
        acc(0,d)
        a(f'HJ_{t}:')
        if t+W<64:
            a(f's_cmp_gt_u32 s{sT}, {t+W}\ns_cbranch_scc0 HK_{t}')
            issue(t+W)
            a(f'HN_{t}:')
        elif t<63:
            a(f's_waitcnt vmcnt(0)\ns_cmp_gt_u32 s{sT}, {t+1}\ns_cbranch_scc0 K2_FIN')
    a('K2_FIN:')
    stamp(a)
    a(f's_cmp_eq_u32 s{sK}, 7\ns_cbranch_scc1 K2_LAST')
    a(f's_cmp_lg_u32 s{sK}, 1\ns_cbranch_scc1 K2_HAVE_D2')
    for s in range(4): a(f'v_mul_f32 v{vD2+s}, v{vDIS+s}, v{vDIS+s}')
    a('K2_HAVE_D2:')
    def publish(s):
        tp=(vD,vD+8,vT,vT+8)[s]
        for j in range(8): a(f'v_mul_f32 v{tp+j}, v{vACC+8*s+j}, v{vD2+s}')
        for j in range(4): a(f'v_cvt_pk_bf16_f32 v{tp+j}, v{tp+2*j}, v{tp+2*j+1}')
        a(f'''v_xor_b32 v{tp+4}, 0x2000, v{vST+s}
        buffer_store_dwordx4 {vr(tp,4)}, v{vST+s}, {SRD_S}, 0 offen sc1
        s_mov_b64 exec, s[{sDUAL+2*s}:{sDUAL+2*s+1}]
        s_cbranch_execz PUB_{s}
        buffer_store_dwordx4 {vr(tp,4)}, v{tp+4}, {SRD_S}, 0 offen sc1
        PUB_{s}:
        s_mov_b64 exec, -1''')
    for s in range(3): publish(s)
    a(f's_cmp_lg_u32 s{sWAVE}, 7\ns_cbranch_scc1 K2_PUB_DONE')
    publish(3)
    a('K2_PUB_DONE:')
    a(f's_cmp_lg_u32 s{sK}, 1\ns_cbranch_scc1 K2_NOX')
    vX=vC; vXR=vC+32
    for s in range(4): a(f'buffer_load_dwordx4 {vr(vXR+4*s,4)}, v{vROW+s}, {SRD_X}, 0 offen')
    a('s_waitcnt vmcnt(0)')
    for s in range(4):
        for j in range(4):
            a(f'v_lshlrev_b32 v{vX+8*s+2*j}, 16, v{vXR+4*s+j}\nv_and_b32 v{vX+8*s+2*j+1}, 0xffff0000, v{vXR+4*s+j}')
    set_tok_index(a,'0')
    emit_tokens(a,vX,False,'X')
    a('K2_NOX:\nK2_LAST:')
    set_tok_index(a,f's{sK}')
    emit_tokens(a,vACC,True,'H')
    a(f'''s_cmp_eq_u32 s{sK}, 7
    s_cbranch_scc1 K2_FINAL''')
    if setup:
        a(f's_cmp_lg_u32 s{sK}, 5\ns_cbranch_scc1 K2_NOSETUP')
        setup(a)
        a('K2_NOSETUP:')
    stamp(a)
    a('s_waitcnt vmcnt(0)')
    stamp(a)
    a('s_barrier')
    stamp(a)
    a(f'''s_cmp_lg_u32 s{sWAVE}, 0
    s_cbranch_scc1 K2_SYNCED
    s_lshl_b32 s54, s{sK}, 12
    s_and_b32 s55, s2, 15
    s_lshl_b32 s55, s55, 7
    s_add_u32 s55, s55, s54
    v_mov_b32 v{vT}, s55
    v_mov_b32 v{vT+1}, 1
    v_lshl_add_u32 v{vT+3}, v{vLANE}, 7, s54
    s_mov_b64 exec, 1
    global_atomic_add v{vT+2}, v{vT}, v{vT+1}, s[{sSYNC}:{sSYNC+1}] sc0
    s_mov_b32 s56, 0
    s_waitcnt vmcnt(0)
    v_cmp_eq_u32 vcc, 15, v{vT+2}
    s_cbranch_vccz K2_NOTLAST
    global_store_dword v{vT}, v{vT+1}, s[{sSYNC}:{sSYNC+1}] offset:2048 sc1
    K2_NOTLAST:
    s_mov_b64 exec, 0xffff
    K2_POLL:
    global_load_dword v{vT+2}, v{vT+3}, s[{sSYNC}:{sSYNC+1}] offset:2048 sc1
    s_add_u32 s{sDEAD}, s{sDEAD}, 1
    s_cmp_gt_u32 s{sDEAD}, 0x1000000
    s_cbranch_scc1 K2_POLLED
    s_waitcnt vmcnt(0)
    v_cmp_ne_u32 vcc, 1, v{vT+2}
    s_cbranch_vccnz K2_POLL
    K2_POLLED:
    s_waitcnt vmcnt(0)
    s_mov_b64 exec, -1
    K2_SYNCED:
    s_add_u32 s16, s16, {TABSTR}
    s_addc_u32 s17, s17, 0
    s_add_u32 s20, s20, {TABSTR}
    s_addc_u32 s21, s21, 0
    s_add_u32 s{sK}, s{sK}, 1
    s_barrier
    s_branch K2_HOP''')
    for t in range(64):
        d=vD+4*(t%W)
        a(f'HB_{t}:'); acc(1,d); a(f's_branch HJ_{t}')
        a(f'HC_{t}:\ns_bitcmp1_b32 s{sM1+t//32}, {t%32}\ns_cbranch_scc1 HD_{t}'); acc(2,d); a(f's_branch HJ_{t}')
        if t+W<64:
            a(f'''HK_{t}:
            s_waitcnt vmcnt(0)
            s_cmp_gt_u32 s{sT}, {t+1}
            s_cbranch_scc0 K2_FIN
            s_branch HN_{t}''')
    for t in range(64):
        d=vD+4*(t%W)
        a(f'HD_{t}:'); acc(3,d); a(f's_branch HJ_{t}')
    a('K2_SLOW:')
    for i in range(32): a(f'v_mov_b32 v{vACC+i}, 0')
    a(f'''s_mov_b32 s64, 0
    SL_SEG:
    s_lshl_b32 s54, s64, 10
    s_lshl_b32 s55, s{sB}, 2
    s_add_u32 s54, s54, s55
    s_add_u32 s54, s54, {WS_OFF-WS_ENT}
    s_buffer_load_dword s65, {SRD_E}, s54
    s_mul_i32 s66, s64, {CH}
    s_waitcnt lgkmcnt(0)
    s_and_b32 s67, s65, 0xffff
    s_lshr_b32 s65, s65, 16
    s_add_u32 s66, s66, s67
    s_lshl_b32 s66, s66, 2
    SL_EDGE:
    s_cmp_eq_u32 s65, 0
    s_cbranch_scc1 SL_NEXT
    s_buffer_load_dword s67, {SRD_E}, s66
    s_sub_u32 s65, s65, 1
    s_add_u32 s66, s66, 4
    s_waitcnt lgkmcnt(0)
    s_bfe_u32 s68, s67, {20|8<<16:#x}
    s_and_b32 s67, s67, 0xffff
    s_lshl_b32 s67, s67, 7''')
    for s in range(4):
        a(f'''v_cmp_eq_u32 vcc, s68, v{vDL+s}
        s_cbranch_vccz SL_N{s}
        v_add_u32 v{vADDR}, s67, v{vSUB}
        buffer_load_dwordx4 {vr(vD,4)}, v{vADDR}, {SRD_G}, 0 offen sc1
        s_mov_b64 exec, vcc
        s_waitcnt vmcnt(0)''')
        for j in range(8): a(f'v_dot2c_f32_bf16 v{vACC+8*s+j}, v{vCHI if j&1 else vCLO}, v{vD+j//2}')
        a(f's_mov_b64 exec, -1\ns_branch SL_EDGE\nSL_N{s}:')
    a(f'''s_branch SL_EDGE
    SL_NEXT:
    s_add_u32 s64, s64, 1
    s_cmp_lt_u32 s64, {NCH}
    s_cbranch_scc1 SL_SEG
    s_waitcnt vmcnt(0)
    s_branch K2_FIN''')
    a('K2_FINAL:')
    stamp(a)
    stampc(a)
    if dbg=='tokens':
        a(f'''s_waitcnt lgkmcnt(0)
        s_barrier
        s_mul_i32 s54, s{sB}, 0x40000
        s_add_u32 s54, s54, {WS_DBG}
        s_add_u32 s54, s14, s54
        s_addc_u32 s55, s15, 0
        v_lshlrev_b32 v{vT}, 4, v0''')
        for i in range(19):
            a(f'''ds_read_b128 {vr(vD,4)}, v{vT}
            s_waitcnt lgkmcnt(0)
            global_store_dwordx4 v{vT}, {vr(vD,4)}, s[54:55]
            s_waitcnt vmcnt(0)
            v_add_u32 v{vT}, 8192, v{vT}''')
        for i in range(8):
            a(f'global_store_dwordx4 v{vT}, {vr(vTOK+4*i,4)}, s[54:55]\nv_add_u32 v{vT}, 8192, v{vT}')
        a(f'global_store_dwordx4 v{vT}, {vr(vROW,4)}, s[54:55]')
    if final: final(a)
    a('K2_END:')
    if DIAG:
        a('s_mov_b32 m0, 48')
        stampc(a)
        stamp(a)
        a('s_waitcnt vmcnt(0)')
        stamp(a)
        a(f'''s_lshl_b32 s54, s2, 3
        s_add_u32 s54, s54, s{sWAVE}
        s_lshl_b32 s54, s54, 8
        s_add_u32 s54, s54, {WS_DBG}
        s_add_u32 s54, s14, s54
        s_addc_u32 s55, s15, 0
        v_mbcnt_lo_u32_b32 v0, -1, 0
        v_mbcnt_hi_u32_b32 v0, -1, v0
        v_lshlrev_b32 v0, 2, v0
        global_store_dword v0, v171, s[54:55]''')
    a('K2_EXIT:\ns_endpgm')
    return (name,a.text(),256,96,512), LDS_TOTAL
if __name__=='__main__':
    import k1,sys
    k,lds=gen_k2(dbg='tokens')
    build_module([k1.gen_k1()[0],k],96,'k12dbg')
    print('lds',lds)
```

```python
from common import *
import k1,k2,final,build
ka,l1=k1.gen_k1(); k2.DIAG=True; kb,l2=k2.gen_k2(final=final.final,setup=final.setup)
b=ka[1]
b=b.replace("    s_load_dwordx8 s[4:11], s[0:1], 0\n","    s_memrealtime s[40:41]\n    s_load_dwordx2 s[42:43], s[0:1], 80\n    s_load_dwordx8 s[4:11], s[0:1], 0\n",1)
b=b.replace("    global_store_dwordx4 v3, v[44:47], s[22:23] sc1\n","""    global_store_dwordx4 v3, v[44:47], s[22:23] sc1
    s_waitcnt vmcnt(0)
    s_memrealtime s[44:45]
    s_cmp_lg_u32 s2, 0
    s_cbranch_scc1 K1_END
    s_waitcnt lgkmcnt(0)
    v_mov_b32 v0, 0x5f00000
    v_mov_b32 v2, s40
    v_mov_b32 v3, s44
    global_store_dwordx2 v0, v[2:3], s[12:13]
""",1)
ka=(ka[0],b)+ka[2:]
b=kb[1]
sel=[0,2,5,6,10,15,20,25,30,35,36,37,49,50]
tail="    s_load_dwordx2 s[54:55], s[0:1], 80\n    s_cmp_lg_u32 s2, 0\n    s_cbranch_scc1 K2_EXIT\n    s_cmp_lg_u32 s3, 7\n    s_cbranch_scc1 K2_EXIT\n    s_waitcnt lgkmcnt(0)\n    v_mov_b32 v0, 0x5f00000\n    global_load_dwordx2 v[2:3], v0, s[14:15]\n    v_mov_b32 v0, 0\n    s_waitcnt vmcnt(0)\n    global_store_dwordx2 v0, v[2:3], s[54:55]\n    s_nop 4\n"
for i,x in enumerate(sel): tail+=f"    v_readlane_b32 s56, v171, {x}\n    s_nop 3\n    v_mov_b32 v2, s56\n    global_store_dword v0, v2, s[54:55] offset:{8+4*i}\n"
b=b.replace("K2_EXIT:\n",tail+"K2_EXIT:\n")
kb=(kb[0],b)+kb[2:]
s=build.HEAD+f'; @launch kernel=prep_kernel grid=(256,1,1) block=({ka[4]},1,1) lds={l1}\n; @launch kernel=main_kernel grid=(256,1,1) block=({kb[4]},1,1) lds={l2}\n'
s+='.amdgcn_target "amdgcn-amd-amdhsa--gfx950"\n.text\n'
for n,b,vg,sg,wg in (ka,kb): s+=kernel_head(n)+b
s+='.section .rodata,"a"\n'
for n,b,vg,sg,wg in (ka,kb): s+=kernel_desc(n,vg,sg,96)
open('var/diagoff.s','w').write(s)
build_module([ka,kb],96,'diagoff_m')
```

```python
from asmlib import *
N=50000; E=800000; BK=196
NCH=250; CH=3200
import os
DA=int(os.environ.get('DA',2))
DL=(DA*6250+63)//64*128
NLINES=DL+(8-DA)*6250
TABSTR=(NLINES*128+0x3fffff)//0x400000*0x400000
WS_ENT =0x7000000
WS_OFF =0x7400000
WS_WFR =0x7500000
WS_SYNC=0x7600000
WS_VOTE=0x7680000
WS_PROBE=0x7800000
WS_DBG =0x8000000
assert 7*TABSTR<=WS_ENT
LOG2E=1.4426950408889634
import struct
def fbits(x): return '0x%08x'%struct.unpack('<I',struct.pack('<f',x))[0]
ALL='row_mask:0xf bank_mask:0xf'
def line0(a, d, n, t0, t1, sSB, mask):
    a(f'''v_lshrrev_b32 v{t0}, 3, v{n}
    v_and_b32 v{t1}, 7, v{n}
    v_cmp_gt_u32 {mask}, {DA}, v{t1}
    v_mad_u32_u24 v{d}, v{t0}, {8-DA}, v{t1}
    v_mad_u32_u24 v{t0}, v{t0}, {DA}, v{t1}
    v_add_u32 v{d}, {sSB}, v{d}
    v_and_b32 v{t1}, 0xffffffc0, v{t0}
    v_add_u32 v{t1}, v{t1}, v{t0}
    v_bfe_u32 v{t0}, v{t0}, 13, 1
    v_lshl_or_b32 v{t1}, v{t0}, 6, v{t1}
    v_cndmask_b32 v{d}, v{d}, v{t1}, {mask}''')
def wave_scan(a, v):
    for c in ['row_shr:1 '+ALL,'row_shr:2 '+ALL,'row_shr:4 '+ALL,'row_shr:8 '+ALL,'row_bcast:15 row_mask:0xa bank_mask:0xf','row_bcast:31 row_mask:0xc bank_mask:0xf']:
        a(f's_nop 1\nv_add_u32_dpp v{v}, v{v}, v{v} {c}')

def interleave(lists):
    out=[]; i=0
    while any(i<len(l) for l in lists):
        for l in lists:
            if i<len(l): out.append(l[i])
        i+=1
    return out
```

```python
from common import *
NPROBE=6
PDELAY='s_nop 11'
def gen_k1(name='prep_kernel'):
    a=Asm()
    SORT=1024
    a(f'''s_cmp_ge_u32 s2, 256
    s_cbranch_scc1 K1_END
    s_load_dwordx8 s[4:11], s[0:1], 0
    s_load_dwordx2 s[12:13], s[0:1], 88
    s_cmp_ge_u32 s2, {NCH}
    s_cbranch_scc1 K1_SPECIAL
    v_lshlrev_b32 v1, 2, v0
    v_mov_b32 v2, 0
    ds_write_b32 v1, v2
    s_mul_i32 s14, s2, {CH*4}
    s_mul_i32 s15, s2, {200*128}
    s_mul_i32 s16, s2, 200
    v_cmp_gt_u32 vcc, 800, v0
    v_lshl_add_u32 v3, v0, 4, s14
    v_lshl_add_u32 v4, v0, 4, s15
    v_lshrrev_b32 v6, 3, v0
    s_and_b64 exec, exec, vcc
    v_add_u32 v6, s16, v6
    v_add_u32 v5, {100*128}, v4
    v_lshlrev_b32 v8, 1, v6
    v_mov_b32 v28, 0
    v_mov_b32 v29, 0
    s_waitcnt lgkmcnt(0)
    global_load_dwordx4 v[12:15], v3, s[8:9]
    global_load_dwordx4 v[16:19], v3, s[6:7]
    global_load_dwordx4 v[20:23], v4, s[4:5]
    global_load_dwordx4 v[24:27], v5, s[4:5]
    global_load_short_d16_hi v28, v8, s[10:11]
    global_load_short_d16_hi v29, v8, s[10:11] offset:200
    s_mov_b32 s17, 85599
    s_mov_b32 s18, {DL-DA}
    s_movk_i32 s19, 5368
    s_movk_i32 s20, {-BK}
    v_mov_b32 v56, 0x2000
    s_add_u32 s22, s12, {WS_ENT}
    s_addc_u32 s23, s13, 0
    s_add_u32 s24, s12, {WS_OFF}
    s_addc_u32 s25, s13, 0
    v_add_u32 v7, 100, v6''')
    line0(a,10,6,30,31,'s18','s[26:27]')
    line0(a,11,7,30,31,'s18','s[28:29]')
    a('''v_and_b32 v30, 7, v0
    v_lshlrev_b32 v30, 4, v30
    v_lshl_add_u32 v10, v10, 7, v30
    v_lshl_add_u32 v11, v11, 7, v30
    s_barrier
    v_mov_b32 v9, 1
    s_waitcnt vmcnt(5)''')
    for j in range(4):
        a(f'''v_mul_u32_u24 v{32+j}, s17, v{12+j}
        v_lshrrev_b32 v{32+j}, 24, v{32+j}
        v_mad_i32_i24 v{12+j}, v{32+j}, s20, v{12+j}
        v_lshlrev_b32 v{32+j}, 2, v{32+j}
        ds_add_rtn_u32 v{36+j}, v{32+j}, v9''')
    a('s_waitcnt vmcnt(4)')
    for j in range(4):
        a(f'''v_mul_u32_u24 v30, s19, v{16+j}
        v_lshrrev_b32 v30, 26, v30
        v_lshl_add_u32 v{12+j}, v{12+j}, 2, v30''')
        line0(a,40+j,16+j,30,31,'s18','s[30:31]')
        a(f'''v_cndmask_b32 v30, 0, v56, s[30:31]
        v_lshl_or_b32 v{12+j}, v{12+j}, 2, v30
        v_lshl_or_b32 v{40+j}, v{40+j}, 15, v{12+j}''')
    a('''s_waitcnt lgkmcnt(0)
    s_barrier
    v_cmp_gt_u32 vcc, 64, v0
    s_cbranch_vccz K1_NOSCAN
    v_lshlrev_b32 v30, 4, v0
    ds_read_b128 v[44:47], v30
    s_lshl_b32 s14, s2, 10
    v_add_u32 v31, s14, v30
    s_waitcnt lgkmcnt(0)
    v_add_u32 v49, v44, v45
    v_add_u32 v50, v49, v46
    v_add_u32 v51, v50, v47
    v_mov_b32 v48, v51''')
    wave_scan(a,48)
    a(f'''v_sub_u32 v48, v48, v51
    v_add_u32 v51, v48, v50
    v_add_u32 v50, v48, v49
    v_add_u32 v49, v48, v44
    s_movk_i32 s14, {SORT}''')
    for j in range(4): a(f'v_lshl_add_u32 v{52+j}, v{48+j}, 2, s14')
    a('ds_write_b128 v30, v[52:55]')
    for j in range(4): a(f'v_lshl_or_b32 v{44+j}, v{44+j}, 16, v{48+j}')
    a(f'''global_store_dwordx4 v31, v[44:47], s[24:25] sc1
    s_mul_i32 s14, s2, 896
    s_add_u32 s14, s14, {WS_SYNC}
    v_add_u32 v31, s14, v30
    v_mov_b32 v48, 0
    v_mov_b32 v49, 0
    v_mov_b32 v50, 0
    v_mov_b32 v51, 0
    global_store_dwordx4 v31, v[48:51], s[12:13] sc1
    s_waitcnt lgkmcnt(0)
    K1_NOSCAN:
    s_barrier''')
    for j in range(4): a(f'ds_read_b32 v{32+j}, v{32+j}')
    a('s_waitcnt vmcnt(0)\ns_mov_b32 s14, 0xffff0000')
    for it,(b,dv) in enumerate(((20,28),(24,29))):
        for j in range(4):
            a(f'''v_lshlrev_b32 v30, 16, v{b+j}
            v_and_b32 v31, s14, v{b+j}
            v_mul_f32 v30, v30, v{dv}
            v_mul_f32 v31, v31, v{dv}
            v_cvt_pk_bf16_f32 v{b+j}, v30, v31''')
        a(f'global_store_dwordx4 v{10+it}, v[{b}:{b+3}], s[12:13] sc1')
        if it==0:
            a('s_waitcnt lgkmcnt(0)')
            for j in range(4):
                a(f'''v_lshl_add_u32 v{32+j}, v{36+j}, 2, v{32+j}
                ds_write_b32 v{32+j}, v{40+j}''')
    a(f'''v_xor_b32 v10, 0x2000, v10
    v_xor_b32 v11, 0x2000, v11
    s_mov_b64 s[32:33], exec
    s_and_b64 exec, s[32:33], s[26:27]
    s_cbranch_execz K1_D0
    global_store_dwordx4 v10, v[20:23], s[12:13] sc1
    K1_D0:
    s_and_b64 exec, s[32:33], s[28:29]
    s_cbranch_execz K1_D1
    global_store_dwordx4 v11, v[24:27], s[12:13] sc1
    K1_D1:
    s_mov_b64 exec, s[32:33]
    v_lshlrev_b32 v30, 4, v0
    s_waitcnt lgkmcnt(0)
    s_barrier
    ds_read_b128 v[44:47], v30 offset:{SORT}
    s_waitcnt lgkmcnt(0)
    global_store_dwordx4 v3, v[44:47], s[22:23] sc1
    K1_END:
    s_endpgm''')
    a(f'''K1_SPECIAL:
    v_lshrrev_b32 v1, 6, v0
    v_and_b32 v2, 63, v0
    v_readfirstlane_b32 s3, v1
    s_cmp_ge_u32 s2, {NCH+1}
    s_cbranch_scc1 K1_PROBE
    s_load_dwordx8 s[16:23], s[0:1], 32
    s_load_dwordx2 s[24:25], s[0:1], 64
    v_and_b32 v3, 15, v2
    v_lshrrev_b32 v4, 4, v2
    s_waitcnt lgkmcnt(0)
    s_add_u32 s26, s12, {WS_WFR}
    s_addc_u32 s27, s13, 0
    s_cmp_ge_u32 s3, 8
    s_cbranch_scc1 K1_MD''')
    a(f'''v_lshrrev_b32 v5, 2, v3
    v_and_b32 v6, 3, v3
    v_lshl_add_u32 v5, v5, 3, v6
    v_lshlrev_b32 v5, 7, v5
    v_lshl_add_u32 v5, v4, 4, v5
    v_add_u32 v6, 4096, v5
    s_and_b32 s14, s3, 3
    s_cmp_ge_u32 s3, 4
    s_cbranch_scc1 K1_WV''')
    def loadA(p):
        for rb in range(4):
            for s in range(2):
                a(f'global_load_dwordx4 {vr(16+8*rb+4*s,4)}, v{5+(rb>>1)}, {p} offset:{512*(rb&1)+64*s}')
    loadA('s[16:17]')
    a(f'''s_lshr_b32 s15, s14, 1
    s_lshl_b32 s15, s15, 12
    s_and_b32 s28, s14, 1
    s_lshl_b32 s28, s28, 9
    s_add_u32 s15, s15, s28
    v_add_u32 v7, s15, v5
    global_load_dwordx4 v[8:11], v7, s[18:19]
    global_load_dwordx4 v[12:15], v7, s[18:19] offset:64
    s_mov_b32 s29, {fbits(LOG2E/8)}
    s_branch K1_WMM
    K1_WV:''')
    loadA('s[20:21]')
    a(f'''s_lshl_b32 s15, s14, 5
    v_lshlrev_b32 v7, 10, v4
    v_lshl_add_u32 v7, v3, 1, v7
    v_add_u32 v7, s15, v7
    v_add_u32 v48, 4096, v7''')
    for s in range(2):
        for j in range(8):
            a(f'global_load_ushort v{64+8*s+j}, v{7 if s==0 else 48}, s[22:23] offset:{128*j}')
    a('s_waitcnt vmcnt(0)')
    for i in range(8): a(f'v_lshl_or_b32 v{8+i}, v{65+2*i}, 16, v{64+2*i}')
    a('''s_mov_b32 s29, 1.0
    K1_WMM:
    s_lshl_b32 s15, s3, 11
    v_lshl_add_u32 v7, v2, 4, s15
    s_waitcnt vmcnt(0)''')
    for rb in range(4):
        a(f'v_mfma_f32_16x16x32_bf16 {vr(48+4*rb,4)}, {vr(16+8*rb,4)}, v[8:11], 0')
    for rb in range(4):
        a(f'v_mfma_f32_16x16x32_bf16 {vr(48+4*rb,4)}, {vr(20+8*rb,4)}, v[12:15], {vr(48+4*rb,4)}')
    a('s_nop 7')
    for i in range(8): a(f'v_add_f32 v{16+i}, v{48+2*i}, v{49+2*i}')
    for i in range(4): a(f'v_add_f32 v{16+i}, v{16+2*i}, v{17+2*i}')
    a(f'''v_add_f32 v16, v16, v17
    v_add_f32 v18, v18, v19
    v_add_f32 v16, v16, v18
    v_mov_b32 v17, v16
    s_nop 1
    v_permlane32_swap_b32 v16, v17
    v_add_f32 v16, v16, v17
    v_mov_b32 v17, v16
    s_nop 1
    v_permlane16_swap_b32 v16, v17
    v_add_f32 v16, v16, v17
    v_mul_f32 v16, {fbits(1/64)}, v16''')
    for i in range(16): a(f'v_sub_f32 v{48+i}, v{48+i}, v16')
    a('s_cmp_ge_u32 s3, 4\ns_cbranch_scc1 K1_WST')
    for i in range(16): a(f'v_add_f32_dpp v{16+i}, v{48+i}, v{48+i} row_mirror {ALL}')
    for c in ('row_half_mirror','quad_perm:[1,0,3,2]','quad_perm:[2,3,0,1]'):
        for i in range(16): a(f'v_add_f32_dpp v{16+i}, v{16+i}, v{16+i} {c} {ALL}')
    a('''s_lshl_b32 s15, s3, 8
    v_lshlrev_b32 v5, 6, v4
    v_add_u32 v6, s15, v5''')
    for i in range(4): a(f'ds_write_b128 v6, {vr(16+4*i,4)} offset:{16*i}')
    a('s_waitcnt lgkmcnt(0)\ns_barrier')
    for w in range(4):
        for i in range(4): a(f'ds_read_b128 {vr(16+4*i,4)}, v5 offset:{256*w+16*i}')
        a('s_waitcnt lgkmcnt(0)')
        for i in range(16): a(f'v_fmac_f32 v{48+i}, {fbits(-1/64)}, v{16+i}')
    a('K1_WST:')
    for i in range(16): a(f'v_mul_f32 v{48+i}, s29, v{48+i}')
    for i in range(8): a(f'v_cvt_pk_bf16_f32 v{16+i}, v{48+2*i}, v{49+2*i}')
    a('''global_store_dwordx4 v7, v[16:19], s[26:27] sc1
    global_store_dwordx4 v7, v[20:23], s[26:27] offset:1024 sc1
    s_endpgm''')
    a(f'''K1_MD:
    s_cmp_ge_u32 s3, 9
    s_cbranch_scc1 K1_END
    v_lshlrev_b32 v5, 3, v4
    v_lshlrev_b32 v6, 1, v2
    v_mov_b32 v7, 0''')
    for blk in range(4): a(f'global_load_dwordx2 {vr(8+2*blk,2)}, v5, s[24:25] offset:{32*blk}')
    a(f'''global_load_short_d16_hi v7, v6, s[24:25]
    v_and_b32 v5, 3, v3
    v_cmp_eq_u32 s[30:31], 0, v5
    v_cmp_eq_u32 s[32:33], 1, v5
    v_mov_b32 v6, 0x3f803f80
    s_nop 0
    v_cndmask_b32 v32, 0, v6, s[30:31]
    s_waitcnt vmcnt(0)''')
    for i in range(8):
        a(f'v_cndmask_b32 v{16+i}, v32, v{8+i}, s[32:33]')
    a('v_lshlrev_b32 v5, 4, v2\nv_add_u32 v5, 16384, v5')
    for i in range(2): a(f'global_store_dwordx4 v5, {vr(16+4*i,4)}, s[26:27] offset:{1024*i} sc1')
    for c in ['row_shr:1 '+ALL,'row_shr:2 '+ALL,'row_shr:4 '+ALL,'row_shr:8 '+ALL,'row_bcast:15 row_mask:0xa bank_mask:0xf','row_bcast:31 row_mask:0xc bank_mask:0xf']:
        a(f's_nop 1\nv_add_f32_dpp v7, v7, v7 {c}')
    a(f'''v_lshlrev_b32 v5, 2, v2
    v_mul_f32 v7, {fbits(-1/64)}, v7
    v_add_u32 v5, 20480, v5
    global_store_dword v5, v7, s[26:27] sc1
    s_endpgm''')
    a(f'''K1_PROBE:
    s_cmp_lg_u32 s3, 0
    s_cbranch_scc1 K1_END
    s_getreg_b32 s16, hwreg(HW_REG_XCC_ID)
    s_sub_u32 s14, s2, {NCH+1}
    s_lshl_b32 s15, s14, 8
    v_lshlrev_b32 v5, 12, v0
    v_add_u32 v5, s15, v5
    v_mov_b32 v4, 0
    s_waitcnt lgkmcnt(0)
    s_add_u32 s26, s12, {WS_PROBE}
    s_addc_u32 s27, s13, 0
    s_add_u32 s28, s12, {WS_VOTE}
    s_addc_u32 s29, s13, 0
    s_mov_b64 exec, 0xff
    global_atomic_add v6, v5, v4, s[26:27] sc0
    s_mov_b64 exec, 1
    s_mov_b32 s18, 0''')
    for i in range(NPROBE):
        base=(i>>1&1)*4096+(((i>>2)^(i>>1))&1)*16384
        first,second=(base,base+8192) if i%2==0 else (base+8192,base)
        a(f'''v_add_u32 v8, {first}, v5
        v_add_u32 v9, {second}, v5
        s_waitcnt vmcnt(0)
        global_atomic_add v6, v8, v4, s[26:27] sc0
        global_atomic_add v7, v9, v4, s[26:27] sc0
        s_waitcnt vmcnt(1)
        {PDELAY}
        s_getreg_b32 s17, hwreg(HW_REG_IB_STS, 0, 4)
        {'s_sub_i32' if i%2==0 else 's_add_i32'} s18, s18, s17''')
    a(f'''s_sub_i32 s17, 0, s18
    s_bitcmp1_b32 s16, 2
    s_cselect_b32 s18, s17, s18
    s_lshl_b32 s14, s14, 2
    v_mov_b32 v5, s14
    s_waitcnt vmcnt(0)
    v_mov_b32 v6, s18
    global_store_dword v5, v6, s[28:29] sc1
    s_endpgm''')
    return (name,a.text(),80,48,832), 1024+CH*4
if __name__=='__main__':
    import sys
    if len(sys.argv)>1: PDELAY=sys.argv[1].replace(';','\n')
    k,lds=gen_k1()
    build_module([k],96,sys.argv[2] if len(sys.argv)>2 else 'k1')
    print('lds',lds)
```

```python
import re,sys
from common import *
import k1
def mk(tag,nox):
    ka,l1=k1.gen_k1()
    b=ka[1]
    n=[0]
    def st():
        i=n[0]; n[0]+=1
        return f"    s_memrealtime s[40:41]\n    s_waitcnt lgkmcnt(0)\n    v_writelane_b32 v79, s40, {i}\n"
    def ins(after):
        nonlocal b
        assert after in b, after
        b=b.replace(after,after+st(),1)
    ins("    s_cbranch_scc1 K1_END\n")
    ins("    global_load_short_d16_hi v29, v8, s[10:11] offset:200\n")
    ins("    s_waitcnt vmcnt(5)\n")
    ins("    s_waitcnt vmcnt(4)\n")
    ins("    s_barrier\n    v_cmp_gt_u32 vcc, 64, v0\n")
    ins("K1_NOSCAN:\n    s_barrier\n")
    ins("    s_mov_b32 s14, 0xffff0000\n")
    ins("    ds_read_b128 v[44:47], v30 offset:1024\n")
    b=b.replace("    global_store_dwordx4 v3, v[44:47], s[22:23] sc1\n","    global_store_dwordx4 v3, v[44:47], s[22:23] sc1\n    s_waitcnt vmcnt(0)\n"+st()+f"""    s_mov_b64 exec, -1
    s_mul_i32 s14, s2, {832*4}
    s_add_u32 s14, s14, {WS_DBG}
    v_lshl_add_u32 v1, v0, 2, s14
    global_store_dword v1, v79, s[12:13]
""",1)
    if nox:
        b=re.sub(r"    global_load_dwordx4 v\[2[04]:2[37]\], v[45], s\[4:5\]\n","    global_load_short_d16_hi v28, v8, s[10:11]\n",b)
        b=re.sub(r"    global_store_dwordx4 v1[01], v\[2[04]:2[37]\], s\[12:13\] sc1\n","",b)
    build_module([(ka[0],b)+ka[2:], ('empty_kernel',f"    s_load_dwordx2 s[4:5], s[0:1], 88\n    s_memrealtime s[6:7]\n    v_mov_b32 v0, {WS_DBG+0x100000}\n    s_waitcnt lgkmcnt(0)\n    v_mov_b32 v1, s6\n    global_store_dword v0, v1, s[4:5]\n    s_endpgm\n",8,16,64)],96,'k1d_'+tag)
mk('x',False); mk('nox',True)
```

```python
from asmlib import *
N=50000; E=800000; BK=196
NCH=250; CH=3200
import os
DB=37760
NLINES=DB+196*128
TABSTR=0x800000
WS_ENT =0x4000000
WS_OFF =0x4400000
WS_WFR =0x4500000
WS_SYNC=0x4600000
WS_VOTE=0x4680000
WS_PROBE=0x4800000
WS_DBG =0x6000000
assert 7*TABSTR<=WS_ENT
LOG2E=1.4426950408889634
import struct
def fbits(x): return '0x%08x'%struct.unpack('<I',struct.pack('<f',x))[0]
ALL='row_mask:0xf bank_mask:0xf'
def line4(a, d, n, t0, t1, sC, mask):
    a(f'''v_and_b32 v{t0}, 3, v{n}
    v_and_b32 v{t1}, 0xffffff00, v{n}
    v_cmp_eq_u32 {mask}, 0, v{t0}
    v_add3_u32 v{t1}, v{t1}, v{n}, {sC}
    v_mad_u32_u24 v{d}, v{n}, 3, v{t0}
    v_bfe_u32 v{t0}, v{t1}, 16, 1
    v_lshl_or_b32 v{t1}, v{t0}, 8, v{t1}
    v_cndmask_b32 v{d}, v{d}, v{t1}, {mask}''')
def wave_scan(a, v):
    for c in ['row_shr:1 '+ALL,'row_shr:2 '+ALL,'row_shr:4 '+ALL,'row_shr:8 '+ALL,'row_bcast:15 row_mask:0xa bank_mask:0xf','row_bcast:31 row_mask:0xc bank_mask:0xf']:
        a(f's_nop 1\nv_add_u32_dpp v{v}, v{v}, v{v} {c}')

def interleave(lists):
    out=[]; i=0
    while any(i<len(l) for l in lists):
        for l in lists:
            if i<len(l): out.append(l[i])
        i+=1
    return out
```

```python
from common import *
from kf import *
from lsched import Op, schedule, emit
OOBL=0x30000
MA=192; WB=224
aT=176; aS=178; aTR=180; aO=184; aSD=186; aAW=187; aAR=188
MD=160; vL2=169; vC2=170
sDG=70
sUP='s[78:79]'
OUT=28; POOL=44; TT=76; BP=92; UU=132; SA=148; SB=152
AYA=[0,4,8,16]; AYB=[20,24,156,172]
sVALID='s[64:65]'; sNSW='s66'; sC1='s67'; sIT=68; sDT=69
SRD_O='s[28:31]'
def frag_load(a):
    t=vT
    a(f'''s_add_u32 s54, s14, {WS_WFR}
    s_addc_u32 s55, s15, 0
    s_lshl_b32 s56, s{sWAVE}, 11
    v_lshl_add_u32 v{t}, v{vLANE}, 4, s56
    s_and_b32 s56, s{sWAVE}, 1
    s_lshl_b32 s56, s56, 10
    s_add_u32 s56, s56, 16384
    v_lshl_add_u32 v{t+1}, v{vLANE}, 4, s56
    v_mov_b32 v{t+2}, {20480+63*4}
    global_load_dwordx4 {vr(MA,4)}, v{t}, s[54:55] sc1
    global_load_dwordx4 {vr(MA+4,4)}, v{t}, s[54:55] offset:1024 sc1
    global_load_dwordx4 {vr(MA+8,4)}, v{t+1}, s[54:55] sc1
    global_load_dword v{MA+12}, v{t+2}, s[54:55] sc1''')
def frag_addr(a,t):
    a(f'''v_lshrrev_b32 v{t}, 3, v{vLANE}
    v_lshl_add_u32 v{t}, v{t}, 10, v{vSUB}
    v_lshlrev_b32 v{t+1}, 4, v{vLANE}
    v_add_u32 v{t+1}, {WSCR}, v{t+1}''')
def frag_stage(a):
    t=vT+12
    frag_addr(a,t)
    a(f'''s_lshl_b32 s56, s{sWAVE}, 14
    v_add_u32 v{t}, s56, v{t}
    s_and_b32 s56, s{sWAVE}, 1
    s_lshl_b32 s56, s56, 10
    v_add_u32 v{t+1}, s56, v{t+1}
    v_readfirstlane_b32 s53, v{MA+12}
    ds_write_b128 v{t}, {vr(MA,4)} offset:896
    ds_write_b128 v{t}, {vr(MA+4,4)} offset:{8192+896}
    ds_write_b128 v{t+1}, {vr(MA+8,4)}''')
def frag_read(a):
    t=vT+12
    frag_addr(a,t)
    a(f'v_add_u32 v{t+2}, 65536, v{t}')
    for i in range(16): a(f'ds_read_b128 {vr(MA+4*i,4)}, v{t+2*(i//8)} offset:{8192*(i%8)+896}')
    for i in range(2): a(f'ds_read_b128 {vr(MD+4*i,4)}, v{t+1} offset:{1024*i}')
def addr_setup(a):
    t=vT
    i_,g_,k_,x_,y_=t+8,t+9,t+10,t+11,t+12
    a(f'''v_and_b32 v{i_}, 15, v{vLANE}
    v_lshrrev_b32 v{g_}, 4, v{vLANE}
    s_lshl_b32 s56, s{sWAVE}, 14
    v_bfe_u32 v{x_}, v{vLANE}, 3, 1
    v_mul_u32_u24 v{x_}, 0x70, v{x_}
    v_xor_b32 v{x_}, v{x_}, v{vSUB}
    v_lshl_or_b32 v{x_}, v{i_}, 7, v{x_}
    v_or_b32 v{x_}, s56, v{x_}
    v_lshlrev_b32 v{y_}, 4, v{g_}
    v_xor_b32 v{aT}, v{x_}, v{y_}
    v_xor_b32 v{aT+1}, 64, v{aT}
    v_xor_b32 v{aS}, 0x470, v{aT}
    v_xor_b32 v{aS+1}, 64, v{aS}
    v_and_b32 v{y_}, 1, v{g_}
    v_lshrrev_b32 v{k_}, 1, v{g_}
    v_lshl_or_b32 v{y_}, v{y_}, 1, v{k_}
    v_lshlrev_b32 v{y_}, 4, v{y_}
    v_xor_b32 v{aO}, v{x_}, v{y_}
    v_xor_b32 v{aO+1}, 64, v{aO}''')
    a(f'''v_lshlrev_b32 v{x_}, 1, v{vSUB}
    v_cmp_gt_u32 s[56:57], 8, v{i_}
    v_mov_b32 v{t+13}, {OOB}''')
    for s in range(4): a(f'ds_bpermute_b32 v{vROW+s}, v{x_}, v{vROW+s}')
    a('s_waitcnt lgkmcnt(0)')
    for s in range(4): a(f'v_add_u32 v{vROW+s}, v{vROW+s}, v{y_}\nv_cndmask_b32 v{vROW+s}, v{t+13}, v{vROW+s}, s[56:57]')
    a(f'''s_lshl_b32 s56, s{sWAVE}, 14
    v_lshrrev_b32 v{x_}, 2, v{vLANE}
    v_and_b32 v{y_}, 7, v{x_}
    v_bfe_u32 v{t+13}, v{vLANE}, 1, 1
    v_xor_b32 v{y_}, v{y_}, v{t+13}
    v_mul_u32_u24 v{t+13}, 7, v{k_}
    v_xor_b32 v{y_}, v{y_}, v{t+13}
    v_lshlrev_b32 v{y_}, 4, v{y_}
    v_lshl_or_b32 v{y_}, v{x_}, 7, v{y_}
    v_and_b32 v{t+13}, 1, v{vLANE}
    v_lshl_or_b32 v{y_}, v{t+13}, 3, v{y_}
    v_or_b32 v{aTR}, s56, v{y_}
    v_xor_b32 v{aTR+1}, 32, v{aTR}
    v_xor_b32 v{aTR+2}, 64, v{aTR}
    v_xor_b32 v{aTR+3}, 0x60, v{aTR}
    s_mul_i32 s56, s{sWAVE}, 1536
    s_add_u32 s56, s56, {STAT}
    v_lshrrev_b32 v{y_}, 2, v{i_}
    v_cmp_eq_u32 vcc, v{y_}, v{g_}
    v_lshl_add_u32 v{x_}, v{i_}, 3, s56
    v_mov_b32 v{t+13}, {OOBL}
    s_lshl_b32 s56, s{sWAVE}, 6
    v_cndmask_b32 v{aSD}, v{t+13}, v{x_}, vcc
    s_add_u32 s56, s56, {ASCR}
    v_lshlrev_b32 v{x_}, 5, v{k_}
    v_lshl_add_u32 v{x_}, v{i_}, 1, v{x_}
    v_add_u32 v{aAW}, s56, v{x_}
    v_lshl_add_u32 v{x_}, v{g_}, 3, s56
    v_sub_u32 v{y_}, v{i_}, v{k_}''')
    for q in range(4):
        a(f'''v_cmp_eq_u32 vcc, {2*q}, v{y_}
        s_nop 1
        v_cndmask_b32 v{aAR+q}, v{t+13}, v{x_}, vcc''')
    a(f'''v_mov_b32 v{vL2}, v{vLDS}
    v_mov_b32 v{vC2}, {fbits(EPS/LOG2E**2)}''')
setup=(frag_load,addr_setup,frag_stage,frag_read)
def q(r): return vr(r,4)
def loadT(p):
    PB=4096*p
    return [Op(f'ds_read_b128 {q(TT+4*s)}, v{aT+s} offset:{PB}',mem=[f'A{p}']) for s in range(2)]+[Op(f'ds_read_b128 {q(TT+8+4*s)}, v{aT+s} offset:{PB+2048}',mem=[f'B{p}']) for s in range(2)]
def mf(d,a_,b_,c): return Op(f'v_mfma_f32_16x16x32_bf16 {q(d)}, {q(a_)}, {q(b_)}, {q(c) if c is not None else 0}')
def cvt(d,s): return Op(f'v_cvt_pk_bf16_f32 v{d}, v{s}, v{s+1}')
def stageX(p):
    PB=4096*p; o=[]; TA=TT; TB=TT+8; UA=UU; UB=UU+8
    for t,(T,U) in enumerate(((TA,UA),(TB,UB))):
        for b in range(4): o.append(mf(POOL+16*t+4*b, MA+8*b, T, None))
        for b in range(4): o.append(mf(POOL+16*t+4*b, MA+8*b+4, T+4, POOL+16*t+4*b))
        for b in range(4): o+= [cvt(U+2*b,POOL+16*t+4*b), cvt(U+2*b+1,POOL+16*t+4*b+2)]
    o+=[Op(f'ds_read_b128 {q(TB+4*s)}, v{aS+s} offset:{PB+2048}',mem=[f'B{p}']) for s in range(2)]
    o+=[mf(SA,TA,UA,None),mf(SA,TA+4,UA+4,SA),mf(SB,TB,UB,None),mf(SB,TB+4,UB+4,SB)]
    for t,(T,AY) in enumerate(((TA,AYA),(TB,AYB))):
        for b in range(4): o.append(Op(f'ds_read_b64_tr_b16 {vr(AY[b]+2,2)}, v{aTR+b} offset:{PB+2048*t}',mem=['AB'[t]+str(p)]))
        for b in range(4): o.append(mf(POOL+16*t+4*b, T, WB+8*b, None))
        for b in range(4): o.append(mf(POOL+16*t+4*b, T+4, WB+8*b+4, POOL+16*t+4*b))
        for b in range(4): o+= [cvt(AY[b],POOL+16*t+4*b), cvt(AY[b]+1,POOL+16*t+4*b+2)]
    for t in range(2):
        o.append(Op(f'ds_read_b64 {vr(BP+4*t+2,2)}, v{aSD} offset:{256*p+128*t}'))
    S=SA; m=SB; m2=SB+1
    txt=[f'v_cndmask_b32 v{S+r}, v{SB+r}, v{SA+r}, {sVALID}' for r in range(4)]
    txt+=[f'v_max3_f32 v{m}, v{S}, v{S+1}, v{S+2}', f'v_max_f32 v{m}, v{m}, v{S+3}', f'v_mov_b32 v{m2}, v{m}', f'v_permlane16_swap_b32 v{m}, v{m2}', f'v_max_f32 v{m}, v{m}, v{m2}']
    txt+=[f'v_sub_f32 v{S+r}, v{S+r}, v{m}' for r in range(4)]+[f'v_exp_f32 v{S+r}, v{S+r}' for r in range(4)]
    txt+=[f'v_add_f32 v{m}, v{S}, v{S+1}', f'v_add_f32 v{m2}, v{S+2}, v{S+3}', f'v_add_f32 v{m}, v{m}, v{m2}', f'v_mov_b32 v{m2}, v{m}', f'v_permlane16_swap_b32 v{m}, v{m2}', f'v_add_f32 v{m}, v{m}, v{m2}', f'v_rcp_f32 v{m}, v{m}']
    txt+=[f'v_mul_f32 v{S+r}, v{S+r}, v{m}' for r in range(4)]
    txt+=[f'v_cvt_pk_bf16_f32 v{S}, v{S}, v{S+1}', f'v_cvt_pk_bf16_f32 v{S+1}, v{S+2}, v{S+3}']
    txt+=[f'v_cndmask_b32 v{BP+h}, 0, v{S+h}, {sVALID}' for h in range(2)]+[f'v_cndmask_b32 v{BP+4+h}, v{S+h}, 0, {sVALID}' for h in range(2)]
    o+=[Op(x) for x in txt]
    for t,AY in enumerate((AYA,AYB)):
        for b in range(4): o.append(mf(POOL+16*t+4*b, AY[b], BP+4*t, None))
    for t,U in enumerate((UA,UB)):
        for b in range(4): o+= [cvt(U+2*b,POOL+16*t+4*b), cvt(U+2*b+1,POOL+16*t+4*b+2)]
        o+=[Op(f'ds_write_b128 v{aO+s}, {q(U+4*s)} offset:{PB+2048*t}',mem=['AB'[t]+str(p)]) for s in range(2)]
    for t,U in enumerate((UA,UB)):
        o+=[mf(BP+4*t,U,U,None), mf(BP+4*t,U+4,U+4,BP+4*t)]
    o+=[mf(SA,MD,UA,None),mf(SA,MD+4,UA+4,SA),mf(SB,MD,UB,None),mf(SB,MD+4,UB+4,SB)]
    for t in range(2):
        for b in range(4): o.append(Op(f'ds_read_b64_tr_b16 {vr(AYB[b]+2*t,2)}, v{aTR+b} offset:{PB+2048*t}',mem=['AB'[t]+str(p)]))
    return o
def stageZ(p):
    GA=BP; GB=BP+4; x=GB; y=GB+1; z=GB+2; u=GB+3
    txt=[f'v_cndmask_b32 v{G}, 0, v{G}, s[{sDG}:{sDG+1}]' for G in (GA,GB)]
    for r in range(1,4): txt+=[f'v_cndmask_b32 v{G}, v{G}, v{G+r}, s[{sDG+2*r}:{sDG+2*r+1}]' for G in (GA,GB)]
    txt+=[f'v_cndmask_b32 v{SB+h}, v{SA+h}, v{SB+h}, {sUP}' for h in range(2)]
    txt+=[f'v_permlane32_swap_b32 v{GA}, v{GB}', f'v_add_f32 v{x}, v{GA}, v{GB}', f'v_mov_b32 v{y}, v{x}', f'v_permlane16_swap_b32 v{x}, v{y}', f'v_add_f32 v{x}, v{x}, v{y}',
          f'v_mul_f32 v{z}, {fbits(-1/64)}, v{SB}', f'v_fma_f32 v{u}, v{SB}, {sNSW}, v{SB+1}', f'v_fmac_f32 v{x}, v{z}, v{SB}', f'v_max_f32 v{x}, 0, v{x}',
          f'v_fma_f32 v{x}, v{x}, {sC1}, v{vC2}', f'v_rsq_f32 v{x}, v{x}', f'v_mul_f32 v{x}, v{x}, v{u}',
          f'v_max_f32_dpp v{y}, v{x}, v{x} quad_perm:[1,0,3,2] {ALL}', f'v_max_f32_dpp v{y}, v{y}, v{y} quad_perm:[2,3,0,1] {ALL}', f'v_max_f32_dpp v{y}, v{y}, v{y} row_half_mirror {ALL}',
          f'v_sub_f32 v{x}, v{x}, v{y}', f'v_exp_f32 v{x}, v{x}',
          f'v_add_f32_dpp v{y}, v{x}, v{x} quad_perm:[1,0,3,2] {ALL}', f'v_add_f32_dpp v{y}, v{y}, v{y} quad_perm:[2,3,0,1] {ALL}', f'v_add_f32_dpp v{y}, v{y}, v{y} row_half_mirror {ALL}',
          f'v_rcp_f32 v{y}, v{y}', f'v_mul_f32 v{x}, v{x}, v{y}', f'v_cvt_pk_bf16_f32 v{x}, v{x}, v{x}']
    o=[Op(t) for t in txt]
    o.append(Op(f'ds_write_b16 v{aAW}, v{x}',mem=['AL']))
    o+=[Op(f'ds_read_b64 {vr(GA+2*t,2)}, v{aAR+2*p+t} offset:{32*t}',mem=['AL']) for t in range(2)]
    o+=[mf(OUT+4*b, AYB[b], GA, OUT+4*b if p else None) for b in range(4)]
    return o
def store():
    o=[cvt(OUT+i,OUT+2*i) for i in range(8)]
    o+=[Op(f'buffer_store_dwordx4 {q(OUT+4*s)}, v{vROW}, {SRD_O}, 0 offen offset:{64*s} sc1') for s in range(2)]
    return o
def put(a,ops,carry=()):
    ops,t=schedule(ops); lines,fl=emit(ops,carry)
    for l in lines: a(l)
    return fl
def consts(a):
    for r in range(4):
        m=sum(1<<(16*g+4*g+r) for g in range(4))
        a(f's_mov_b32 s{sDG+2*r}, {m&0xffffffff:#x}\ns_mov_b32 s{sDG+2*r+1}, {m>>32:#x}')
    a(f'''s_mov_b32 s78, 0
    s_mov_b32 s79, -1
    s_mov_b32 s28, s12
    s_mov_b32 s29, s13
    s_mov_b32 s64, 0x00ff00ff
    s_mov_b32 s65, 0xff00ff00
    s_mov_b32 {sNSW}, s53
    s_mov_b32 {sC1}, {fbits(1/(64*LOG2E**2))}
    s_mov_b32 s{sIT}, 0''')
def final(a):
    consts(a)
    FP=os.environ.get('FP','1')
    if FP=='1': a('s_setprio 3')
    a('s_waitcnt lgkmcnt(0)\nF_LOOP:')
    put(a, loadT(0)+stageX(0)+loadT(1)+stageZ(0)+stageX(1)+stageZ(1)+store())
    import kf; kf.stamp(a)
    a(f'''s_add_u32 s{sIT}, s{sIT}, 1
    s_cmp_lg_u32 s{sIT}, 1
    s_cbranch_scc1 F_NODUMP''')
    if FP=='1': a(f's_cmp_eq_u32 s{sWAVE}, 7\ns_cbranch_scc1 F_P1\ns_setprio 2\nF_P1:')
    for k in range(8):
        a(f'v_xor_b32 v{POOL+k}, {k*0x90}, v{vL2}\nds_write_b128 v{POOL+k}, {q(vTOK+4*k)}')
    a(f'''F_NODUMP:
    s_mov_b32 s{sDT}, 8192
    s_cmp_eq_u32 s{sIT}, 2
    s_cselect_b32 s{sDT}, -8192, s{sDT}''')
    if FP=='1': a(f's_cbranch_scc0 F_P2\ns_setprio 2\ns_cmp_eq_u32 s{sWAVE}, 7\ns_cbranch_scc1 F_P2\ns_setprio 1\nF_P2:')
    a(f'''    s_cmp_eq_u32 s{sIT}, 3
    s_cselect_b32 s{sDT}, 16384, s{sDT}''')
    for r in range(aT,aO+2): a(f'v_add_u32 v{r}, s{sDT}, v{r}')
    a(f'v_add_u32 v{aSD}, 512, v{aSD}')
    for s in range(3): a(f'v_mov_b32 v{vROW+s}, v{vROW+s+1}')
    a(f'''s_cmp_lt_u32 s{sIT}, 3
    s_cbranch_scc1 F_LOOP
    s_cmp_lg_u32 s{sWAVE}, 7
    s_cbranch_scc1 K2_END''')
    put(a, loadT(0)+stageX(0)+stageZ(0)+store())
```

```python
from common import *
import os
W=int(os.environ.get('W',5))
GAUX=os.environ.get('GAUX','sc1')
PRIO=os.environ.get('PRIO','0')
XP=os.environ.get('XP','')
SLICES=eval(os.environ.get('SL','[(0,21,23,25),(6,7,16,25),(2,9,20,25),(1,15,19,25),(4,12,13,25),(8,10,11,25),(3,5,22,25),(14,17,18,24)]'))
CNT=0; HIST=3328; FLAG=3584; NODEOF=3712; SMAP=4608; LIST=8192; LSTR=260
AH=65536; ASORT=66560; XS=81920; XD=108544
STAT=139264; ASCR=152064; WSCR=152576; LDS_TOTAL=154624; VOTES=3600
OOB=0x7f000000
vLANE=1; vSUB=2; vADDR=3; vLDS=4; vSTAT=5; vCLO=6; vCHI=7
vSIG=172; vPOLL=173; vONE=174; vZERO=175; vPV=168
vXR=116
vST=8; vROW=12; vDIS=16; vD2=20; vDL=24; vEO=28; vACC=44; vD=76; vTOK=100; vT=132; vC=176
sWAVE=3; sB=4; sN0=5; sK=6; sT=7
SRD_G='s[16:19]'; SRD_S='s[20:23]'; SRD_E='s[24:27]'; SRD_X='s[28:31]'; SRD_D='s[32:35]'
sSYNC=36; sM1=38; sM2=40; sDUAL=42; sSIDE=50; sSLOW=51; sDEAD=52
NR=5
EPS=1e-5

def stats_ops(base, tmp, scale, d2, tokdst):
    t0,t1,t2,t3=tmp,tmp+1,tmp+2,tmp+3
    o=[f'v_add_f32 v{t0}, v{base}, v{base+4*(1)}', f'v_mul_f32 v{t1}, v{base}, v{base}', f'v_add_f32 v{t2}, v{base+4*(2)}, v{base+4*(3)}', f'v_mul_f32 v{t3}, v{base+4*(1)}, v{base+4*(1)}']
    for i in range(2,8):
        o.append(f'v_fmac_f32 v{t1+2*(i&1)}, v{base+4*(i)}, v{base+4*(i)}')
        if i>=4: o.append(f'v_add_f32 v{t0+2*(i&1)}, v{t0+2*(i&1)}, v{base+4*(i)}')
    o+=[f'v_add_f32 v{t0}, v{t0}, v{t2}', f'v_add_f32 v{t1}, v{t1}, v{t3}']
    for c in ('quad_perm:[1,0,3,2]','quad_perm:[2,3,0,1]','row_half_mirror'):
        o+=[f'DPP v_add_f32_dpp v{t0}, v{t0}, v{t0} {c} {ALL}', f'v_add_f32_dpp v{t1}, v{t1}, v{t1} {c} {ALL}']
    o+=[f'v_mul_f32 v{t0}, v{t0}, v{t0}', f'v_mov_b32 v{t2}, {fbits(EPS)}', f'v_fmac_f32 v{t1}, {fbits(-1/64)}, v{t0}', f'v_max_f32 v{t1}, 0, v{t1}']
    if d2 is not None: o+=[f'v_mul_f32 v{t1}, v{t1}, v{d2}']
    o+=[f'v_fmac_f32 v{t2}, {fbits(1/64)}, v{t1}', f'v_sqrt_f32 v{t1}, v{t2}',
        f'TRN v_cvt_pk_bf16_f32 v{t1}, v{t1}, v{t1}', f'v_and_b32 v{t2}, 0xffff0000, v{t1}', f'v_rcp_f32 v{t2}, v{t2}',
        f'v_and_b32 v{t0}, s61, v{t1}', f'v_and_b32 v{t1}, s57, v{t1}']
    if scale is not None: o+=[f'v_mul_f32 v{t2}, v{t2}, v{scale}']
    o+=[f'v_mul_f32 v{base+4*(i)}, v{base+4*(i)}, v{t2}' for i in range(8)]
    o+=[f'v_cvt_pk_bf16_f32 v{tokdst+i}, v{base+4*(2*i)}, v{base+4*(2*i+1)}' for i in range(4)]
    return o
def emit_ops(a, ops, solo):
    for op in ops:
        if op.startswith('DPP ') or op.startswith('TRN '):
            if solo: a('s_nop 0')
            op=op[4:]
        a(op)

def emit_tokens(a, src, scaled, tag):
    tp=vT+16
    dst=[vT, vT+4, vTOK]
    ls=[stats_ops(src+s, tp+4*s, vDIS+s if scaled else None, vD2+s if scaled else None, dst[s]) for s in range(3)]
    keep=ls[2][-4:]; ls[2]=ls[2][:-4]
    emit_ops(a, interleave(ls), False)
    a('s_lshr_b32 s54, s62, 1\ns_set_gpr_idx_on s54, gpr_idx(DST)')
    emit_ops(a, keep, False)
    a('s_set_gpr_idx_off')
    a(f'''v_xor_b32 v{vADDR}, s60, v{vLDS}
    v_add_u32 v{tp+3}, s62, v{vSTAT}
    ds_write_b128 v{vADDR}, {vr(vT,4)}
    ds_write_b128 v{vADDR}, {vr(vT+4,4)} offset:8192
    s_mov_b64 exec, s[58:59]''')
    for s in range(3): a(f'ds_write_b64 v{tp+3}, {vr(tp+4*s,2)} offset:{512*s}')
    a(f'''s_mov_b64 exec, -1
    s_cmp_lg_u32 s{sWAVE}, 7
    s_cbranch_scc1 TOK_DONE_{tag}''')
    emit_ops(a, stats_ops(src+3, tp+4, vDIS+3 if scaled else None, vD2+3 if scaled else None, vT+8), True)
    a(f'''ds_write_b128 v{vADDR}, {vr(vT+8,4)} offset:16384
    s_mov_b64 exec, s[58:59]
    ds_write_b64 v{tp+3}, {vr(tp+4,2)} offset:1536
    s_mov_b64 exec, -1
    TOK_DONE_{tag}:''')
def set_tok_index(a, k):
    a(f'''s_mul_i32 s60, {k}, 0x90
    s_bitcmp1_b32 s60, 4
    s_cselect_b32 s61, 0xffff0000, s63
    s_bitcmp1_b32 s60, 5
    s_cselect_b32 s57, s61, 0
    s_cselect_b32 s61, 0, s61
    s_lshl_b32 s62, {k}, 3''')

DIAG=False
def stamp(a,op='s_memrealtime'):
    if DIAG: a(f'''{op} s[96:97]
    s_waitcnt lgkmcnt(0)
    s_mov_b32 m0, s98
    s_add_u32 s98, s98, 1
    v_writelane_b32 v171, s96, m0''')
def stampc(a): stamp(a,'s_memtime')
NPROBE=int(os.environ.get('NPROBE',2))
PF=int(os.environ.get('PF',2))
Q=int(os.environ.get('Q',8))
PFT=int(os.environ.get('PFT',36))
def signal(a,v=None):
    a(f'''s_mov_b64 exec, 0xffff
    global_atomic_add v{vSIG}, v{v or vONE}, s[{sSYNC}:{sSYNC+1}]
    s_mov_b64 exec, -1''')
def poll(a,tag,first=True,lowbyte=False):
    a(f's_mov_b32 s54, 0\ns_mov_b64 exec, 0xffff')
    if not first: a(f's_branch POLLW_{tag}')
    a(f'''POLL_{tag}:
    s_add_u32 s54, s54, 1
    s_cmp_gt_u32 s54, s{sDEAD}
    s_cselect_b32 s{sDEAD}, 0, s{sDEAD}
    s_cbranch_scc1 POLLED_{tag}
    global_atomic_add v{vPV}, v{vPOLL}, v{vZERO}, s[{sSYNC}:{sSYNC+1}] sc0
    POLLW_{tag}:
    s_waitcnt vmcnt(0)''')
    if lowbyte: a(f'v_and_b32 v42, 0xff, v{vPV}\nv_cmpx_ne_u32 vcc, 16, v42')
    else: a(f'v_cmpx_ne_u32 vcc, 16, v{vPV}')
    a(f'''s_cbranch_execnz POLL_{tag}
    POLLED_{tag}:
    s_mov_b64 exec, -1''')
def next_slot(a):
    a(f's_add_u32 s{sSYNC}, s{sSYNC}, 32768\ns_addc_u32 s{sSYNC+1}, s{sSYNC+1}, 0')

B=176
i_,g_,p0,p1,p2=B+3,B+4,B+5,B+6,B+7
vb=B+8; va=B+16; vd=B+48; vu=B+64
def weights(a):
    a(f'''S_WEIGHTS:
    s_load_dwordx8 s[64:71], s[0:1], 32
    s_load_dwordx2 s[72:73], s[0:1], 64
    v_and_b32 v{i_}, 15, v{vLANE}
    v_lshrrev_b32 v{g_}, 4, v{vLANE}
    s_add_u32 s74, s14, {WS_WFR}
    s_addc_u32 s75, s15, 0
    s_cmp_eq_u32 s{sK}, 2
    s_cbranch_scc1 S_MD''')
    a(f'''v_lshrrev_b32 v{p0}, 2, v{i_}
    v_and_b32 v{p1}, 3, v{i_}
    v_lshl_add_u32 v{p0}, v{p0}, 3, v{p1}
    v_lshlrev_b32 v{p0}, 7, v{p0}
    v_lshl_add_u32 v{p0}, v{g_}, 4, v{p0}
    v_add_u32 v{p1}, 4096, v{p0}
    s_and_b32 s54, s{sWAVE}, 3
    s_cmp_ge_u32 s{sWAVE}, 4
    s_waitcnt lgkmcnt(0)
    s_cbranch_scc1 S_WV''')
    def loadA(p):
        for rb in range(4):
            for s in range(2):
                a(f'global_load_dwordx4 {vr(va+8*rb+4*s,4)}, v{p0+(rb>>1)}, {p} offset:{512*(rb&1)+64*s}')
    loadA('s[64:65]')
    a(f'''s_lshr_b32 s55, s54, 1
    s_lshl_b32 s55, s55, 12
    s_and_b32 s56, s54, 1
    s_lshl_b32 s56, s56, 9
    s_add_u32 s55, s55, s56
    v_add_u32 v{p2}, s55, v{p0}
    global_load_dwordx4 {vr(vb,4)}, v{p2}, s[66:67]
    global_load_dwordx4 {vr(vb+4,4)}, v{p2}, s[66:67] offset:64
    s_mov_b32 s57, {fbits(LOG2E/8)}
    s_branch S_WMM
    S_WV:''')
    loadA('s[68:69]')
    a(f'''s_lshl_b32 s55, s54, 5
    v_lshlrev_b32 v{p2}, 10, v{g_}
    v_lshl_add_u32 v{p2}, v{i_}, 1, v{p2}
    v_add_u32 v{p2}, s55, v{p2}
    v_add_u32 v{vd}, 4096, v{p2}''')
    for s in range(2):
        for j in range(8):
            a(f'global_load_ushort v{vu+8*s+j}, v{p2 if s==0 else vd}, s[70:71] offset:{128*j}')
    a('s_waitcnt vmcnt(0)')
    for i in range(8): a(f'v_lshl_or_b32 v{vb+i}, v{vu+1+2*i}, 16, v{vu+2*i}')
    a(f'''s_mov_b32 s57, 1.0
    S_WMM:
    s_lshl_b32 s55, s{sWAVE}, 11
    v_lshl_add_u32 v{p2}, v{vLANE}, 4, s55
    s_waitcnt vmcnt(0)''')
    for rb in range(4):
        a(f'v_mfma_f32_16x16x32_bf16 {vr(vd+4*rb,4)}, {vr(va+8*rb,4)}, {vr(vb,4)}, 0')
    for rb in range(4):
        a(f'v_mfma_f32_16x16x32_bf16 {vr(vd+4*rb,4)}, {vr(va+4+8*rb,4)}, {vr(vb+4,4)}, {vr(vd+4*rb,4)}')
    a('s_nop 7')
    for i in range(8): a(f'v_add_f32 v{va+i}, v{vd+2*i}, v{vd+1+2*i}')
    for i in range(4): a(f'v_add_f32 v{va+i}, v{va+2*i}, v{va+1+2*i}')
    a(f'''v_add_f32 v{va}, v{va}, v{va+1}
    v_add_f32 v{va+2}, v{va+2}, v{va+3}
    v_add_f32 v{va}, v{va}, v{va+2}
    v_mov_b32 v{va+1}, v{va}
    s_nop 1
    v_permlane32_swap_b32 v{va}, v{va+1}
    v_add_f32 v{va}, v{va}, v{va+1}
    v_mov_b32 v{va+1}, v{va}
    s_nop 1
    v_permlane16_swap_b32 v{va}, v{va+1}
    v_add_f32 v{va}, v{va}, v{va+1}
    v_mul_f32 v{va}, {fbits(1/64)}, v{va}''')
    for i in range(16): a(f'v_sub_f32 v{vd+i}, v{vd+i}, v{va}')
    for i in range(16): a(f'v_add_f32_dpp v{va+i}, v{vd+i}, v{vd+i} row_mirror {ALL}')
    for c in ('row_half_mirror','quad_perm:[1,0,3,2]','quad_perm:[2,3,0,1]'):
        for i in range(16): a(f'v_add_f32_dpp v{va+i}, v{va+i}, v{va+i} {c} {ALL}')
    a(f'''s_lshl_b32 s55, s{sWAVE}, 8
    v_lshlrev_b32 v{p0}, 6, v{g_}
    v_add_u32 v{p0}, {WSCR}, v{p0}
    v_add_u32 v{p1}, s55, v{p0}''')
    for i in range(4): a(f'ds_write_b128 v{p1}, {vr(va+4*i,4)} offset:{16*i}')
    a(f's_waitcnt lgkmcnt(0)\ns_barrier\ns_cmp_ge_u32 s{sWAVE}, 4\ns_cbranch_scc1 S_WST')
    for w in range(4):
        for i in range(4): a(f'ds_read_b128 {vr(va+4*i,4)}, v{p0} offset:{256*w+16*i}')
        a('s_waitcnt lgkmcnt(0)')
        for i in range(16): a(f'v_fmac_f32 v{vd+i}, {fbits(-1/64)}, v{va+i}')
    a('S_WST:')
    for i in range(16): a(f'v_mul_f32 v{vd+i}, s57, v{vd+i}')
    for i in range(8): a(f'v_cvt_pk_bf16_f32 v{va+i}, v{vd+2*i}, v{vd+1+2*i}')
    a(f'''global_store_dwordx4 v{p2}, {vr(va,4)}, s[74:75] sc1
    global_store_dwordx4 v{p2}, {vr(va+4,4)}, s[74:75] offset:1024 sc1
    s_branch K2_WDONE
    S_MD:
    s_cmp_lg_u32 s{sWAVE}, 1
    s_waitcnt lgkmcnt(0)
    s_cbranch_scc1 K2_WDONE
    v_lshlrev_b32 v{p0}, 3, v{g_}
    v_lshlrev_b32 v{p1}, 1, v{vLANE}
    v_mov_b32 v{p2}, 0''')
    for blk in range(4): a(f'global_load_dwordx2 {vr(vb+2*blk,2)}, v{p0}, s[72:73] offset:{32*blk}')
    a(f'''global_load_short_d16_hi v{p2}, v{p1}, s[72:73]
    v_and_b32 v{p0}, 3, v{i_}
    v_cmp_eq_u32 s[54:55], 0, v{p0}
    v_cmp_eq_u32 s[56:57], 1, v{p0}
    v_mov_b32 v{p1}, 0x3f803f80
    s_nop 0
    v_cndmask_b32 v{vd}, 0, v{p1}, s[54:55]
    s_waitcnt vmcnt(0)''')
    for i in range(8):
        a(f'v_cndmask_b32 v{va+i}, v{vd}, v{vb+i}, s[56:57]')
    a(f'v_lshlrev_b32 v{p0}, 4, v{vLANE}\nv_add_u32 v{p0}, 16384, v{p0}')
    for i in range(2): a(f'global_store_dwordx4 v{p0}, {vr(va+4*i,4)}, s[74:75] offset:{1024*i} sc1')
    for c in ['row_shr:1 '+ALL,'row_shr:2 '+ALL,'row_shr:4 '+ALL,'row_shr:8 '+ALL,'row_bcast:15 row_mask:0xa bank_mask:0xf','row_bcast:31 row_mask:0xc bank_mask:0xf']:
        a(f's_nop 1\nv_add_f32_dpp v{p2}, v{p2}, v{p2} {c}')
    a(f'''v_lshlrev_b32 v{p0}, 2, v{vLANE}
    v_mul_f32 v{p2}, {fbits(-1/64)}, v{p2}
    v_add_u32 v{p0}, 20480, v{p0}
    global_store_dword v{p0}, v{p2}, s[74:75] sc1
    s_branch K2_WDONE''')
def special1(a):
    a(f'''A_SPECIAL:
    v_mov_b32 v44, 0
    s_cmp_lg_u32 s2, {NCH}
    s_cbranch_scc1 S_PROBE
    v_add_u32 v40, {WS_SYNC}, v12
    v_mov_b32 v45, 0
    v_mov_b32 v46, 0
    v_mov_b32 v47, 0''')
    for i in range(4):
        a(f'global_store_dwordx4 v40, v[44:47], s[14:15] sc1\nv_add_u32 v40, 8192, v40')
    a(f'''s_branch A_NOLOAD
    S_PROBE:
    s_cmp_lg_u32 s{sWAVE}, 0
    s_cbranch_scc1 A_NOLOAD
    s_and_b32 s54, s2, 1
    s_bfe_u32 s55, s2, 0x10001
    s_lshl_b32 s54, s54, 12
    s_lshl_b32 s55, s55, 14
    s_add_u32 s55, s55, s54
    s_and_b32 s54, s2, 7
    s_lshl_b32 s54, s54, 8
    s_add_u32 s55, s55, s54
    s_add_u32 s55, s55, {WS_PROBE}
    v_lshl_add_u32 v40, v0, 13, s55
    s_mov_b64 exec, 3
    global_atomic_add v42, v40, v44, s[14:15] sc0
    s_mov_b64 exec, -1
    v_add_u32 v41, 8192, v40
    s_branch A_NOLOAD''')
def special2(a):
    a(f'''s_waitcnt vmcnt(0) lgkmcnt(0)
    s_barrier
    s_cmp_lg_u32 s{sWAVE}, 0
    s_cbranch_scc1 A_JOIN
    s_mov_b64 exec, 1
    s_cmp_lg_u32 s2, {NCH}
    s_cbranch_scc1 S_SAMPLE
    global_store_dword v{vZERO}, v{vONE}, s[10:11] sc1
    s_mov_b64 exec, -1
    s_branch A_JOIN
    S_SAMPLE:
    s_mov_b32 s56, 0''')
    for i in range(NPROBE):
        a(f'''global_atomic_add v42, v{40+i%2}, v44, s[14:15] sc0
        global_atomic_add v43, v{41-i%2}, v44, s[14:15] sc0
        s_waitcnt vmcnt(1)
        s_nop 11
        s_getreg_b32 s57, hwreg(HW_REG_IB_STS, 0, 4)
        {'s_sub_i32' if i%2==0 else 's_add_i32'} s56, s56, s57''')
        if i<NPROBE-1: a('s_waitcnt vmcnt(0)')
    a(f'''s_mov_b64 exec, -1
    global_load_dword v35, v{vZERO}, s[10:11] sc1
    s_sub_i32 s57, 0, s56
    s_bitcmp1_b32 s{sSIDE}, 2
    s_cselect_b32 s56, s57, s56
    s_lshl_b32 s53, s56, 8
    s_or_b32 s53, s53, 1
    s_branch A_JOIN''')

def gen(name, final=None, setup=None):
    a=Asm()
    vE=44; vKA=64; vRK=84; vREM=104
    aD=44; aS_=52; aH=60; aR=68; aE=76; aX=108; aXD=124; aXA=128
    a('s_cmp_ge_u32 s2, 256\ns_cbranch_scc1 K2_EXIT')
    if DIAG: a('s_mov_b32 s98, 0\nv_mov_b32 v171, 0')
    stamp(a)
    a(f'''s_load_dwordx8 s[64:71], s[0:1], 0
    s_load_dwordx2 s[14:15], s[0:1], 88
    s_load_dwordx4 s[8:11], s[0:1], 72
    v_lshrrev_b32 v8, 6, v0
    v_lshlrev_b32 v12, 4, v0
    v_readfirstlane_b32 s{sWAVE}, v8
    s_mul_i32 s54, s2, {CH*4}
    v_add_u32 v30, s54, v12
    v_add_u32 v31, 8192, v30
    v_cmp_gt_u32 vcc, 288, v0
    s_mov_b64 s[72:73], vcc
    s_getreg_b32 s{sSIDE}, hwreg(HW_REG_XCC_ID)
    v_mov_b32 v40, 0
    v_mov_b32 v41, 0
    s_and_b32 s{sB}, s2, 7
    s_lshl_b32 s{sB}, s{sB}, 5
    s_lshr_b32 s54, s2, 3
    s_add_u32 s{sB}, s{sB}, s54
    s_mul_i32 s{sN0}, s{sB}, {BK}
    v_lshrrev_b32 v32, 3, v0
    s_lshl_b32 s62, s{sN0}, 7
    v_add_u32 v32, s{sN0}, v32
    s_add_u32 s63, s62, 8192
    s_add_u32 s76, s62, 16384
    s_add_u32 s77, s62, {136*128}
    v_lshlrev_b32 v34, 1, v32
    s_mov_b32 s30, {N*128}
    s_mov_b32 s31, 0x20000
    s_mov_b32 s34, {N*2}
    s_mov_b32 s35, 0x20000
    s_mov_b32 s53, 1''')
    for i in range(4): a(f'v_mov_b32 v{aXD+i}, 0')
    if PF:
        a(f'''s_getpc_b64 s[54:55]
        PF_BASE:
        s_and_b32 s56, s2, 0xf8
        s_add_u32 s56, s56, s{sWAVE}
        s_lshl_b32 s56, s56, 7
        s_min_u32 s56, s56, K2_CODE_END-PF_BASE-68
        s_add_u32 s57, s56, 64''')
    a(f'''s_cmp_lg_u32 s{sWAVE}, 7
    s_waitcnt lgkmcnt(0)
    s_mov_b32 s28, s64
    s_mov_b32 s29, s65
    s_mov_b32 s32, s70
    s_mov_b32 s33, s71
    s_cbranch_scc1 A_X3
    s_mov_b32 exec_hi, 0
    buffer_load_dwordx4 {vr(aX+12,4)}, v12, {SRD_X}, s77 offen
    buffer_load_short_d16_hi v{aXD+3}, v34, {SRD_D}, 0 offen offset:272
    s_mov_b64 exec, -1
    A_X3:''')
    for i in range(3):
        a(f"buffer_load_dwordx4 {vr(aX+4*i,4)}, v12, {SRD_X}, {('s62','s63','s76')[i]} offen")
        a(f'buffer_load_short_d16_hi v{aXD+i}, v34, {SRD_D}, 0 offen offset:{128*i}')
    a(f'''{'s_load_dword s99, s[54:55], s56' if PF else ''}
    {'s_load_dword s95, s[54:55], s57' if PF>1 else ''}
    s_cmp_ge_u32 s2, {NCH}
    s_cbranch_scc0 A_EDGES''')
    special1(a)
    a(f'''A_EDGES:
    s_cmp_ge_u32 s{sWAVE}, 5
    s_cbranch_scc1 A_LOAD0
    s_mov_b64 exec, s[72:73]
    global_load_dwordx4 {vr(aD+4,4)}, v31, s[68:69]
    global_load_dwordx4 {vr(aS_+4,4)}, v31, s[66:67]
    s_mov_b64 exec, -1
    A_LOAD0:
    global_load_dwordx4 {vr(aD,4)}, v30, s[68:69]
    global_load_dwordx4 {vr(aS_,4)}, v30, s[66:67]''')
    a(f'''A_NOLOAD:
    v_mov_b32 v{vZERO}, 0
    v_lshlrev_b32 v16, 2, v0
    v_add_u32 v13, {AH}, v12
    v_add_u32 v16, {AH}, v16
    ds_write_b32 v16, v{vZERO}''')
    a(f'''s_mov_b32 s12, s8
    s_mov_b32 s13, s9
    s_mov_b32 s16, s14
    s_mov_b32 s17, s15
    s_mov_b32 s18, {NLINES*128}
    s_mov_b32 s19, 0x20000
    s_add_u32 s20, s14, {TABSTR}
    s_addc_u32 s21, s15, 0
    s_mov_b32 s22, {NLINES*128}
    s_mov_b32 s23, 0x20000
    s_add_u32 s24, s14, {WS_ENT}
    s_addc_u32 s25, s15, 0
    s_mov_b32 s26, {WS_OFF-WS_ENT+NCH*1024}
    s_mov_b32 s27, 0x20000
    s_add_u32 s{sSYNC}, s14, {WS_SYNC}
    s_addc_u32 s{sSYNC+1}, s15, 0
    s_mov_b32 s{sDEAD}, 0x800000
    v_and_b32 v{vLANE}, 63, v0
    v_and_b32 v{vSUB}, 7, v0
    v_lshlrev_b32 v{vSUB}, 4, v{vSUB}
    v_mov_b32 v{vCLO}, 0x3f80
    v_mov_b32 v{vCHI}, 0x3f800000
    v_mov_b32 v{vONE}, 1
    s_and_b32 s54, s2, 15
    s_lshl_b32 s54, s54, 7
    v_lshl_add_u32 v{vSIG}, v{vLANE}, 11, s54
    s_lshr_b32 s54, s2, 4
    s_lshl_b32 s54, s54, 11
    v_lshl_add_u32 v{vPOLL}, v{vLANE}, 7, s54
    v_lshrrev_b32 v8, 3, v{vLANE}
    v_and_b32 v9, 1, v8
    v_mul_u32_u24 v9, 0x70, v9
    v_xor_b32 v{vLDS}, v{vSUB}, v9
    v_lshl_or_b32 v{vLDS}, v8, 10, v{vLDS}
    s_lshl_b32 s54, s{sWAVE}, 14
    v_or_b32 v{vLDS}, s54, v{vLDS}
    s_mul_i32 s54, s{sWAVE}, 1536
    s_add_u32 s54, s54, {STAT}
    v_lshl_add_u32 v{vSTAT}, v8, 6, s54
    v_lshrrev_b32 v9, 1, v0
    s_lshl_b32 s54, s{sB}, 2
    s_add_u32 s54, s54, {WS_OFF-WS_ENT}
    v_lshl_add_u32 v10, v9, 10, s54
    v_and_b32 v14, 1, v0
    v_mul_u32_u24 v9, {CH}, v9
    v_lshlrev_b32 v14, 2, v14
    v_add_u32 v9, v9, v14
    v_mov_b32 v35, 0
    s_mov_b32 s58, {4*DB}
    v_mov_b32 v26, 0xffff0000
    v_add_u32 v27, {XS}, v12
    v_lshrrev_b32 v28, 3, v0
    v_lshlrev_b32 v28, 2, v28
    v_add_u32 v28, {XD}, v28''')
    for i in range(4):
        line4(a,aXA+i,32,24,25,'s58','s[74:75]')
        a(f'v_add_u32 v32, {(64,64,8,0)[i]}, v32\nv_lshl_add_u32 v{aXA+i}, v{aXA+i}, 5, v{vSUB}')
    def xitem(i):
        b=aX+4*i; r=(0,64,128,136)[i]
        a(f'ds_write_b128 v27, {vr(b,4)} offset:{128*r}\nds_write_b32 v28, v{aXD+i} offset:{4*r}')
        for j in range(4):
            a(f'''v_lshlrev_b32 v24, 16, v{b+j}
            v_and_b32 v25, v26, v{b+j}
            v_mul_f32 v24, v24, v{aXD+i}
            v_mul_f32 v25, v25, v{aXD+i}
            v_cvt_pk_bf16_f32 v{b+j}, v24, v25''')
        a(f'''v_xor_b32 v29, 0x2000, v{aXA+i}
        buffer_store_dwordx4 {vr(b,4)}, v{aXA+i}, {SRD_G}, 0 offen sc1
        s_and_b64 exec, exec, s[74:75]
        buffer_store_dwordx4 {vr(b,4)}, v29, {SRD_G}, 0 offen sc1
        s_mov_b64 exec, -1''')
    def xlast(tag):
        a(f's_cmp_lg_u32 s{sWAVE}, 7\ns_cbranch_scc1 A_XE{tag}\ns_mov_b32 exec_hi, 0')
        xitem(3)
        a(f'A_XE{tag}:')
    a(f'''s_waitcnt vmcnt(4)
    s_cmp_lt_u32 s{sWAVE}, 5
    s_cbranch_scc1 A_XW
    s_waitcnt vmcnt(2)
    A_XW:
    s_cmp_lt_u32 s2, {NCH}
    s_cbranch_scc1 A_XW2
    s_waitcnt vmcnt(0)
    A_XW2:''')
    for i in range(3): xitem(i)
    a(f's_cmp_lt_u32 s2, {NCH}\ns_cbranch_scc1 A_SORT')
    xlast('S'); special2(a)
    a(f'''A_SORT:
    s_mov_b32 s55, 21913099
    s_mov_b32 s56, 343597
    s_movk_i32 s57, {-BK}
    s_mov_b32 s58, {4*DB+1}
    s_mov_b32 s59, {AH>>2}
    s_waitcnt lgkmcnt(0)
    s_barrier''')
    stamp(a)
    def quad_dst(q):
        for j in range(4*q,4*q+4):
            a(f'''v_mul_hi_u32 v{aH+j}, v{aD+j}, s55
            v_mad_i32_i24 v{aD+j}, v{aH+j}, s57, v{aD+j}
            v_add_lshl_u32 v{aH+j}, v{aH+j}, s59, 2
            ds_add_rtn_u32 v{aR+j}, v{aH+j}, v{vONE}''')
    def quad_src(q):
        for j in range(4*q,4*q+4):
            a(f'''v_mul_hi_u32 v24, v{aS_+j}, s56
            v_lshl_add_u32 v{aD+j}, v{aD+j}, 2, v24''')
            line4(a,aE+j,aS_+j,24,25,'s58','s[60:61]')
            a(f'''v_lshl_or_b32 v{aE+j}, v{aE+j}, 11, v{aD+j}
            v_lshlrev_b32 v{aE+j}, 2, v{aE+j}''')
    a(f'''s_cmp_ge_u32 s{sWAVE}, 5
    s_cbranch_scc1 A_ONE
    s_waitcnt vmcnt(9)
    s_mov_b64 exec, s[72:73]''')
    quad_dst(1)
    a('s_waitcnt vmcnt(8)')
    quad_src(1)
    a(f's_mov_b64 exec, -1\nA_ONE:\ns_waitcnt vmcnt(6)')
    stamp(a)
    quad_dst(0); quad_src(0)
    xlast('')
    a(f'''s_waitcnt lgkmcnt(0)
    s_barrier
    s_cmp_lg_u32 s{sWAVE}, 0
    s_cbranch_scc1 A_NOSCAN
    ds_read_b128 v[16:19], v13
    global_load_dword v35, v{vZERO}, s[10:11] sc1
    s_lshl_b32 s54, s2, 10
    s_add_u32 s62, s54, {WS_OFF}
    s_add_u32 s63, s54, {WS_SYNC+32768}
    v_add_u32 v28, s62, v12
    v_add_u32 v29, s63, v12
    s_waitcnt lgkmcnt(0)
    v_add_u32 v21, v16, v17
    v_add_u32 v22, v21, v18
    v_add_u32 v23, v22, v19
    v_mov_b32 v20, v23''')
    wave_scan(a,20)
    a(f'''v_sub_u32 v20, v20, v23
    v_add_u32 v23, v20, v22
    v_add_u32 v22, v20, v21
    v_add_u32 v21, v20, v16
    s_mov_b32 s54, {ASORT}''')
    for j in range(4): a(f'v_lshl_add_u32 v{24+j}, v{20+j}, 2, s54')
    a('ds_write_b128 v13, v[24:27]')
    for j in range(4): a(f'v_lshl_or_b32 v{16+j}, v{16+j}, 16, v{20+j}\nv_mov_b32 v{36+j}, 0')
    a(f'''global_store_dwordx4 v28, v[16:19], s[14:15] sc1
    global_store_dwordx4 v29, v[36:39], s[14:15] sc1
    s_waitcnt lgkmcnt(0)
    A_NOSCAN:
    s_barrier''')
    for j in range(4): a(f'ds_read_b32 v{aH+j}, v{aH+j}')
    a(f's_cmp_ge_u32 s{sWAVE}, 5\ns_cbranch_scc1 A_SC1\ns_mov_b64 exec, s[72:73]')
    for j in range(4,8): a(f'ds_read_b32 v{aH+j}, v{aH+j}')
    a('s_waitcnt lgkmcnt(0)')
    for j in range(4,8): a(f'v_lshl_add_u32 v{aH+j}, v{aR+j}, 2, v{aH+j}\nds_write_b32 v{aH+j}, v{aE+j}')
    a('s_mov_b64 exec, -1\ns_branch A_SC2\nA_SC1:\ns_waitcnt lgkmcnt(0)\nA_SC2:')
    for j in range(4): a(f'v_lshl_add_u32 v{aH+j}, v{aR+j}, 2, v{aH+j}\nds_write_b32 v{aH+j}, v{aE+j}')
    a(f'''s_waitcnt lgkmcnt(0)
    s_barrier
    ds_read_b128 v[16:19], v13 offset:{ASORT-AH}
    ds_read_b128 v[20:23], v13 offset:{ASORT-AH+8192}
    s_waitcnt lgkmcnt(1)
    buffer_store_dwordx4 v[16:19], v30, {SRD_E}, 0 offen sc1
    s_cmp_ge_u32 s{sWAVE}, 5
    s_cbranch_scc1 A_JOIN
    s_mov_b64 exec, s[72:73]
    s_waitcnt lgkmcnt(0)
    buffer_store_dwordx4 v[20:23], v31, {SRD_E}, 0 offen sc1
    s_mov_b64 exec, -1
    A_JOIN:''')
    if DIAG: a('s_mov_b32 s98, 3')
    stamp(a)
    for j in range(4): a(f'v_mov_b32 v{24+j}, 0\nv_mov_b32 v{36+j}, {OOB}')
    a('ds_write_b128 v12, v[24:27]')
    for i in range(7): a(f'ds_write_b128 v12, v[36:39] offset:{LIST+8192*i}')
    a(f'''s_waitcnt vmcnt(0) lgkmcnt(7)
    s_barrier''')
    stamp(a)
    a(f'''s_cmp_lg_u32 s{sWAVE}, 0
    s_cbranch_scc1 A_DONE
    s_mov_b32 s54, 0
    v_mov_b32 v40, s53
    A_ZW:
    v_cmp_ne_u32 vcc, 0, v35
    s_cbranch_vccnz A_ZOK
    global_load_dword v35, v{vZERO}, s[10:11] sc1
    s_add_u32 s54, s54, 1
    s_cmp_gt_u32 s54, s{sDEAD}
    s_waitcnt vmcnt(0)
    s_cbranch_scc0 A_ZW
    A_ZOK:''')
    signal(a,40)
    a(f'v_lshlrev_b32 v41, 2, v{vLANE}')
    poll(a,'A',lowbyte=True)
    a(f'''s_mov_b64 exec, 0xffff
    ds_write_b32 v41, v{vPV} offset:{VOTES}
    s_mov_b64 exec, -1
    s_cmp_lg_u32 s2, {NCH}
    s_waitcnt lgkmcnt(0)
    s_cbranch_scc1 A_DONE
    global_store_dword v{vZERO}, v{vZERO}, s[10:11] sc1''')
    a('A_DONE:\ns_waitcnt lgkmcnt(0)')
    next_slot(a)
    a('s_barrier')
    stamp(a)
    a(f'''buffer_load_dword v11, v10, {SRD_E}, 0 offen sc1
    ds_read_b128 v[16:19], v{vZERO} offset:{VOTES+48}
    ds_read_b32 v20, v{vZERO} offset:{VOTES+44}
    s_waitcnt vmcnt(0)
    v_and_b32 v15, 0xffff, v11
    v_lshrrev_b32 v11, 16, v11
    v_add_lshl_u32 v9, v9, v15, 2
    v_sub_u32 v{vREM}, v11, v14''')
    stamp(a)
    for r in range(NR):
        a(f'''v_cmpx_lt_i32 vcc, {8*r}, v{vREM}
        s_cbranch_execz K2_LD_DONE
        buffer_load_dwordx4 {vr(vE+4*r,4)}, v9, {SRD_E}, 0 offen offset:{32*r} sc1''')
    a(f'''K2_LD_DONE:
    s_mov_b64 exec, -1
    v_cmp_lt_u32 vcc, {8*NR}, v11
    s_cbranch_vccz K2_LEN_OK
    v_mov_b32 v15, {FLAG}
    ds_write_b32 v15, v{vONE}
    K2_LEN_OK:
    s_lshl_b32 s{sSIDE}, s{sSIDE}, 11
    s_and_b32 s{sSIDE}, s{sSIDE}, 0x2000
    s_movk_i32 s54, 0xff80
    s_waitcnt lgkmcnt(0)
    v_add3_u32 v16, v16, v17, v18
    v_add3_u32 v16, v16, v19, v20
    v_cmp_lt_i32 vcc, 0xff, v16
    v_mov_b32 v15, s{sSIDE}
    v_xor_b32 v16, 0x2000, v15
    v_cndmask_b32 v15, v15, v16, vcc
    s_waitcnt vmcnt(0)''')
    stamp(a)
    def chain(body, end, first):
        for i in range(4*NR):
            m=f's[{56+2*i}:{57+2*i}]'
            a(f'v_cmpx_lt_i32 {m}, {8*(i//4)+i%4}, v{vREM}' if first else f's_mov_b64 exec, {m}')
            if i%2==0: a(f's_cbranch_execz {end}')
            body(i)
        a(f'{end}:\ns_mov_b64 exec, -1')
    chain(lambda i: a(f'''v_and_b32 v{vKA+i}, 0xfff, v{vE+i}
        v_and_b32 v17, v15, v{vE+i}
        ds_add_rtn_u32 v{vRK+i}, v{vKA+i}, v{vONE}
        v_lshrrev_b32 v{vE+i}, 8, v{vE+i}
        v_bitop3_b32 v{vE+i}, v17, v{vE+i}, s54 bitop3:0x78'''), 'K2_A_DONE', True)
    a(f'''s_waitcnt lgkmcnt(0)
    s_barrier
    s_cmp_ge_u32 s{sWAVE}, 4
    s_cbranch_scc1 K2_P2_DONE
    v_cmpx_gt_u32 vcc, 208, v0
    ds_read_b128 v[16:19], v12
    v_mul_u32_u24 v20, {LSTR}, v0
    v_add_u32 v20, {LIST}, v20
    v_lshl_or_b32 v27, v0, 16, v20
    s_waitcnt lgkmcnt(0)
    v_add3_u32 v24, v16, v17, v18
    v_lshl_add_u32 v21, v16, 2, v20
    v_add_u32 v24, v24, v19
    v_lshl_add_u32 v22, v17, 2, v21
    v_min_u32 v25, 63, v24
    v_lshl_add_u32 v23, v18, 2, v22
    v_sub_u32 v26, 63, v25
    ds_write_b128 v12, v[20:23]
    v_lshlrev_b32 v26, 2, v26
    v_cmpx_gt_u32 vcc, {BK}, v0
    ds_add_rtn_u32 v28, v26, v{vONE} offset:{HIST}
    s_mov_b64 exec, -1
    s_waitcnt lgkmcnt(0)
    K2_P2_DONE:
    v_lshlrev_b32 v29, 2, v{vLANE}
    v_mov_b32 v15, {FLAG}
    s_barrier''')
    stamp(a)
    a(f'ds_read_b32 v30, v29 offset:{HIST}\nds_read_b32 v15, v15')
    chain(lambda i: a(f'ds_read_b32 v{vKA+i}, v{vKA+i}'), 'K2_B_DONE', False)
    for w in range(8):
        sl=SLICES[w]; a(f's_mov_b32 s{38+w}, {sl[0]|sl[1]<<8|sl[2]<<16|sl[3]<<24:#x}')
    a(f'''s_mov_b32 m0, s{sWAVE}
    v_lshlrev_b32 v9, 2, v8
    s_movrels_b32 s55, s38
    v_add_u32 v9, {NODEOF}, v9
    s_waitcnt lgkmcnt(0)
    v_mov_b32 v31, v30''')
    chain(lambda i: a(f'v_lshl_add_u32 v{vKA+i}, v{vRK+i}, 2, v{vKA+i}\nds_write_b32 v{vKA+i}, v{vE+i}'), 'K2_C_DONE', False)
    wave_scan(a,31)
    a(f'''v_readfirstlane_b32 s{sSLOW}, v15
    v_readfirstlane_b32 s56, v30
    s_cmp_ge_u32 s{sWAVE}, 4
    s_cbranch_scc1 K2_P3_SKIP
    v_sub_u32 v32, v31, v30
    ds_bpermute_b32 v32, v26, v32
    v_cmp_gt_u32 vcc, {BK}, v0
    s_waitcnt lgkmcnt(0)
    v_add_u32 v32, v32, v28
    v_cndmask_b32 v32, v0, v32, vcc
    v_lshlrev_b32 v32, 2, v32
    v_cmpx_gt_u32 vcc, 208, v0
    ds_write_b32 v32, v27 offset:{NODEOF}
    s_mov_b64 exec, -1
    K2_P3_SKIP:
    s_or_b32 s{sSLOW}, s{sSLOW}, s56''')
    for s in range(4):
        a(f'''s_bfe_u32 s{64+s}, s55, {8*s|8<<16:#x}
        s_lshl_b32 s56, s{64+s}, 3
        v_cmp_ge_u32 vcc, s56, v31
        s_lshl_b32 s{64+s}, s{64+s}, 5
        s_bcnt1_i32_b64 s56, vcc
        s_sub_i32 s56, 63, s56
        s_max_i32 s{68+s}, s56, 0''')
    a(f'''s_add_u32 s72, s68, s69
    s_add_u32 s73, s72, s70
    s_add_u32 s{sT}, s73, s71
    s_cmp_gt_u32 s{sT}, 64
    s_cselect_b32 s{sSLOW}, 1, s{sSLOW}
    s_lshl_b32 s54, s{sWAVE}, 8
    s_add_u32 s54, s54, {SMAP}
    v_cmp_le_u32 s[74:75], s68, v{vLANE}
    v_cmp_le_u32 s[76:77], s72, v{vLANE}
    v_cmp_le_u32 s[78:79], s73, v{vLANE}
    v_cmp_le_u32 s[80:81], s{sT}, v{vLANE}
    v_mov_b32 v16, v{vLANE}
    v_cvt_f32_u32 v17, s68
    v_mov_b32 v18, s64''')
    for s,(m,c) in enumerate((('s[74:75]','s68'),('s[76:77]','s72'),('s[78:79]','s73')),1):
        a(f'''s_mov_b64 exec, {m}
        v_subrev_u32 v16, {c}, v{vLANE}
        v_cvt_f32_u32 v17, s{68+s}
        v_mov_b32 v18, s{64+s}''')
    a(f'''s_mov_b64 exec, -1
    v_rcp_f32 v17, v17
    v_cvt_f32_u32 v19, v16
    v_mov_b32 v21, {fbits(Q/2)}
    v_fmac_f32 v21, {fbits(Q)}, v19
    v_lshlrev_b32 v16, 2, v16
    v_mul_f32 v19, v21, v17
    v_lshl_or_b32 v18, v18, 16, v16
    v_cvt_u32_f32 v19, v19
    s_lshl_b32 s56, s64, 16
    s_or_b32 s56, s56, 256
    v_min_u32 v19, {Q-1}, v19
    v_mov_b32 v20, v{vLANE}
    s_mov_b64 exec, s[80:81]
    v_mov_b32 v19, 15
    v_mov_b32 v18, s56
    s_mov_b64 exec, -1
    s_mov_b32 s55, 0''')
    for c in range(Q):
        a(f'''v_cmpx_eq_u32 vcc, {c}, v19
        v_mov_b32 v20, s55
        s_bcnt1_i32_b64 s56, vcc
        v_mbcnt_lo_u32_b32 v20, vcc_lo, v20
        s_add_u32 s55, s55, s56
        v_mbcnt_hi_u32_b32 v20, vcc_hi, v20
        s_mov_b64 exec, -1''')
    a(f'''v_lshl_add_u32 v20, v20, 2, s54
    ds_write_b32 v20, v18
    v_and_b32 v22, 3, v{vLANE}
    v_add_u32 v21, s54, v29
    v_lshl_add_u32 v22, v22, 4, s54''')
    vV=44; vL=60
    for c in range(4): a(f'ds_read_b128 {vr(vV+4*c,4)}, v22 offset:{64*c}')
    a('ds_read_u16 v21, v21 offset:2')
    for s in range(4): a(f'v_add_u32 v{16+s}, s{64+s}, v9')
    a('s_waitcnt lgkmcnt(0)')
    for i in range(16):
        a(f'v_add_u32_sdwa v{vL+i}, v9, v{vV+i} dst_sel:DWORD dst_unused:UNUSED_PAD src0_sel:DWORD src1_sel:WORD_1')
    a('s_barrier')
    stamp(a)
    for s in range(4): a(f'ds_read_u16 v{vDL+s}, v{16+s} offset:2')
    for i in range(16): a(f'ds_read_u16 v{vL+i}, v{vL+i}')
    a(f'''v_cmp_eq_u32 s[74:75], s65, v21
    v_cmp_eq_u32 s[76:77], s66, v21
    v_cmp_eq_u32 s[78:79], s67, v21''')
    for c in range(4):
        a(f's_waitcnt lgkmcnt(12)')
        for r in range(4):
            i=4*c+r
            a(f'''v_add_u32_sdwa v{vL+i}, v{vL+i}, v{vV+i} dst_sel:DWORD dst_unused:UNUSED_PAD src0_sel:DWORD src1_sel:WORD_0
            ds_read_b32 v{vEO+i}, v{vL+i}''')
    a(f'v_add_u32 v22, {XS}, v{vSUB}\ns_mov_b32 s54, {XD}')
    for s in range(4):
        a(f'''v_lshl_add_u32 v23, v{vDL+s}, 7, v22
        v_lshl_add_u32 v{vDIS+s}, v{vDL+s}, 2, s54
        ds_read_b128 {vr(vXR+4*s,4)}, v23
        ds_read_b32 v{vDIS+s}, v{vDIS+s}''')
    a(f'''s_or_b64 s[74:75], s[74:75], s[78:79]
    s_or_b64 s[76:77], s[76:77], s[78:79]
    s_mov_b32 s78, 0x55555555
    s_mov_b32 s79, 0x55555555''')
    for h in range(2):
        a(f'''s_bitreplicate_b64_b32 s[80:81], s{74+h}
        s_bitreplicate_b64_b32 s[82:83], s{76+h}
        s_and_b64 s[80:81], s[80:81], s[78:79]
        s_andn2_b64 s[82:83], s[82:83], s[78:79]
        s_or_b64 s[{sM1+2*h}:{sM1+2*h+1}], s[80:81], s[82:83]''')
    a(f'''s_mov_b32 s58, 0x01010101
    s_mov_b32 s59, 0x01010101
    s_mov_b32 s63, 0xffff
    s_mov_b32 s{sK}, 1''')
    if PF:
        a(f'''s_getpc_b64 s[92:93]
        PF_BASE2:
        s_and_b32 s94, s2, 0xf8
        s_add_u32 s94, s94, s{sWAVE}
        s_lshl_b32 s94, s94, 7
        s_min_u32 s94, s94, K2_CODE_END-PF_BASE2-68
        s_add_u32 s91, s94, 64''')
    a('s_waitcnt lgkmcnt(0)\ns_barrier')
    def issue(t):
        r=(t//16)*4+t%4; J=(t//4)%4
        a(f'v_add_u32_dpp v{vADDR}, v{vEO+r}, v{vSUB} quad_perm:[{J},{J},{J},{J}] {ALL}')
        a(f'buffer_load_dwordx4 {vr(vD+4*(t%W),4)}, v{vADDR}, {SRD_G}, 0 offen {GAUX}')
    a('K2_HOP:')
    stamp(a)
    a('s_setprio 1')
    a(f's_cmp_lg_u32 s{sK}, 4\ns_cbranch_scc1 K2_NOF')
    setup[0](a)
    a('K2_NOF:')
    for t in range(W): issue(t)
    a(f'''s_cmp_gt_u32 s{sK}, 4
    s_cbranch_scc1 K2_ONCE_DONE
    s_cmp_lg_u32 s{sK}, 1
    s_cbranch_scc1 K2_HAVE_ROWS
    s_mov_b32 s54, {4*DB}
    s_movk_i32 s55, {BK}
    v_mov_b32 v{vT+4}, {OOB}''')
    for s in range(4):
        a(f'''v_cmp_gt_u32 s[74:75], s55, v{vDL+s}
        v_add_u32 v{vT}, s{sN0}, v{vDL+s}
        v_mul_f32 v{vD2+s}, v{vDIS+s}, v{vDIS+s}
        v_lshl_add_u32 v{vROW+s}, v{vT}, 7, v{vSUB}
        v_cndmask_b32 v{vROW+s}, v{vT+4}, v{vROW+s}, s[74:75]''')
        line4(a,vST+s,vT,vT+2,vT+3,'s54',f's[{sDUAL+2*s}:{sDUAL+2*s+1}]')
        a(f'''v_lshl_add_u32 v{vST+s}, v{vST+s}, 5, v{vSUB}
        v_cndmask_b32 v{vST+s}, v{vT+4}, v{vST+s}, s[74:75]''')
    a(f'''s_branch K2_ONCE_DONE
    K2_HAVE_ROWS:
    s_cmp_eq_u32 s{sK}, 4
    s_cbranch_scc1 K2_SETUP
    s_lshr_b32 s54, s{sWAVE}, 2
    s_add_u32 s54, s54, 2
    s_cmp_lg_u32 s{sK}, s54
    s_cbranch_scc1 K2_ONCE_DONE''')
    for s in range(4):
        for j in range(4):
            a(f'v_lshlrev_b32 v{vACC+s+8*j}, 16, v{vXR+4*s+j}\nv_and_b32 v{vACC+s+8*j+4}, 0xffff0000, v{vXR+4*s+j}')
    set_tok_index(a,'0')
    emit_tokens(a,vACC,False,'X')
    a('s_branch K2_ONCE_DONE\nK2_SETUP:')
    setup[1](a)
    a('K2_ONCE_DONE:')
    for i in range(32): a(f'v_mov_b32 v{vACC+i}, 0')
    a(f's_cmp_lg_u32 s{sSLOW}, 0\ns_cbranch_scc1 K2_SLOW')
    for t in range(64):
        d=vD+4*(t%W)
        a(f'''s_bfe_u32 s54, s{sM1+t//16}, {2*(t%16)|2<<16:#x}
        s_set_gpr_idx_on s54, gpr_idx(SRC2,DST)
        s_waitcnt vmcnt({W-1})''')
        for j in range(8): a(f'v_dot2c_f32_bf16 v{vACC+4*j}, v{vCHI if j&1 else vCLO}, v{d+j//2}')
        a('s_set_gpr_idx_off')
        if t==PFT and PF: a('s_load_dword s99, s[92:93], s94\ns_load_dword s95, s[92:93], s91')
        if t+W<64:
            a(f's_cmp_gt_u32 s{sT}, {t+W}\ns_cbranch_scc0 HK_{t}')
            issue(t+W)
            a(f'HN_{t}:')
        elif t<63:
            a(f's_waitcnt vmcnt(0)\ns_cmp_gt_u32 s{sT}, {t+1}\ns_cbranch_scc0 K2_FIN')
    a('K2_FIN:')
    stamp(a)
    a(f's_cmp_eq_u32 s{sK}, 7\ns_cbranch_scc1 K2_LAST')
    a('s_nop 0')
    def publish(s):
        tp=(vD,vD+8,vT,vT+8)[s]
        for j in range(8): a(f'v_mul_f32 v{tp+j}, v{vACC+4*j+s}, v{vD2+s}')
        for j in range(4): a(f'v_cvt_pk_bf16_f32 v{tp+j}, v{tp+2*j}, v{tp+2*j+1}')
        a(f'''v_xor_b32 v{tp+4}, 0x2000, v{vST+s}
        buffer_store_dwordx4 {vr(tp,4)}, v{vST+s}, {SRD_S}, 0 offen sc1
        s_mov_b64 exec, s[{sDUAL+2*s}:{sDUAL+2*s+1}]
        s_cbranch_execz PUB_{s}
        buffer_store_dwordx4 {vr(tp,4)}, v{tp+4}, {SRD_S}, 0 offen sc1
        PUB_{s}:
        s_mov_b64 exec, -1''')
    for s in range(3): publish(s)
    a(f's_cmp_lg_u32 s{sWAVE}, 7\ns_cbranch_scc1 K2_PUB_DONE')
    publish(3)
    a(f'''K2_PUB_DONE:
    s_cmp_lg_u32 s2, 255
    s_cbranch_scc1 K2_WDONE
    s_cmp_le_u32 s{sK}, 2
    s_cbranch_scc1 S_WEIGHTS
    K2_WDONE:''')
    a(f'''s_setprio 0
    s_cmp_ge_u32 s{sWAVE}, 4
    s_cbranch_scc1 K2_ARRIVE
    K2_LAST:''')
    set_tok_index(a,f's{sK}')
    emit_tokens(a,vACC,True,'H')
    a(f'''s_cmp_eq_u32 s{sK}, 7
    s_cbranch_scc1 K2_FINAL
    s_cmp_ge_u32 s{sWAVE}, 4
    s_cbranch_scc1 K2_EXTRA
    K2_ARRIVE:''')
    stamp(a)
    a('s_waitcnt vmcnt(0)')
    stamp(a)
    a('s_barrier')
    stamp(a)
    a(f'''s_cmp_ge_u32 s{sWAVE}, 4
    s_cbranch_scc1 K2_LAST
    s_cmp_lg_u32 s{sWAVE}, 0
    s_cbranch_scc1 K2_EXTRA
    s_setprio 2''')
    signal(a)
    a('K2_EXTRA:')
    a(f's_cmp_lg_u32 s{sK}, 4\ns_cbranch_scc1 K2_NOE4')
    setup[2](a)
    a(f'K2_NOE4:\ns_cmp_lg_u32 s{sK}, 5\ns_cbranch_scc1 K2_NOE5')
    setup[3](a)
    a('K2_NOE5:')
    a(f'''s_cmp_lg_u32 s{sWAVE}, 0
    s_cbranch_scc1 K2_SYNCED''')
    poll(a,'H')
    a(f'''K2_SYNCED:
    s_add_u32 s16, s16, {TABSTR}
    s_addc_u32 s17, s17, 0
    s_add_u32 s20, s20, {TABSTR}
    s_addc_u32 s21, s21, 0
    s_add_u32 s{sSYNC}, s{sSYNC}, 32768
    s_addc_u32 s{sSYNC+1}, s{sSYNC+1}, 0
    s_add_u32 s{sK}, s{sK}, 1
    s_waitcnt lgkmcnt(0)
    s_barrier
    s_branch K2_HOP''')
    for t in range(64):
        d=vD+4*(t%W)
        if t+W<64:
            a(f'''HK_{t}:
            s_waitcnt vmcnt(0)
            s_cmp_gt_u32 s{sT}, {t+1}
            s_cbranch_scc0 K2_FIN
            s_branch HN_{t}''')
    a('K2_SLOW:')
    a(f'''s_mov_b32 s64, 0
    SL_SEG:
    s_lshl_b32 s54, s64, 10
    s_lshl_b32 s55, s{sB}, 2
    s_add_u32 s54, s54, s55
    s_add_u32 s54, s54, {WS_OFF-WS_ENT}
    buffer_load_dword v{vT}, v{vZERO}, {SRD_E}, s54 offen sc1
    s_mul_i32 s66, s64, {CH}
    s_waitcnt vmcnt(0)
    v_readfirstlane_b32 s65, v{vT}
    s_and_b32 s67, s65, 0xffff
    s_lshr_b32 s65, s65, 16
    s_add_u32 s66, s66, s67
    s_lshl_b32 s66, s66, 2
    SL_EDGE:
    s_cmp_eq_u32 s65, 0
    s_cbranch_scc1 SL_NEXT
    buffer_load_dword v{vT}, v{vZERO}, {SRD_E}, s66 offen sc1
    s_sub_u32 s65, s65, 1
    s_add_u32 s66, s66, 4
    s_waitcnt vmcnt(0)
    v_readfirstlane_b32 s67, v{vT}
    s_bfe_u32 s68, s67, {4|8<<16:#x}
    s_lshr_b32 s67, s67, 15
    s_lshl_b32 s67, s67, 7''')
    for s in range(4):
        a(f'''v_cmp_eq_u32 vcc, s68, v{vDL+s}
        s_cbranch_vccz SL_N{s}
        v_add_u32 v{vADDR}, s67, v{vSUB}
        buffer_load_dwordx4 {vr(vD,4)}, v{vADDR}, {SRD_G}, 0 offen sc1
        s_mov_b64 exec, vcc
        s_waitcnt vmcnt(0)''')
        for j in range(8): a(f'v_dot2c_f32_bf16 v{vACC+4*j+s}, v{vCHI if j&1 else vCLO}, v{vD+j//2}')
        a(f's_mov_b64 exec, -1\ns_branch SL_EDGE\nSL_N{s}:')
    a(f'''s_branch SL_EDGE
    SL_NEXT:
    s_add_u32 s64, s64, 1
    s_cmp_lt_u32 s64, {NCH}
    s_cbranch_scc1 SL_SEG
    s_waitcnt vmcnt(0)
    s_branch K2_FIN''')
    a('K2_FINAL:')
    stamp(a)
    stampc(a)
    if final: final(a)
    a('K2_END:')
    if DIAG:
        a('s_mov_b32 s98, 56')
        stampc(a)
        stamp(a)
        a('s_waitcnt vmcnt(0)')
        stamp(a)
        a(f'''s_lshl_b32 s54, s2, 3
        s_add_u32 s54, s54, s{sWAVE}
        s_lshl_b32 s54, s54, 8
        s_add_u32 s54, s54, {WS_DBG}
        s_add_u32 s54, s14, s54
        s_addc_u32 s55, s15, 0
        v_mbcnt_lo_u32_b32 v0, -1, 0
        v_mbcnt_hi_u32_b32 v0, -1, v0
        v_lshlrev_b32 v0, 2, v0
        global_store_dword v0, v171, s[54:55]''')
    a('K2_EXIT:\ns_endpgm')
    weights(a)
    a('K2_CODE_END:')
    return (name,a.text(),256,100,512), LDS_TOTAL
```

```python
import sys
from common import *
import kf,final
NAME='standalone__hybrid_graph_tf_nagphormer__graph_kernel'
HEAD=open('standalone__hybrid_graph_tf_nagphormer__graph.s.ref').read().split('; Override launch')[0]
def text(k,lds):
    n,b,vg,sg,wg=k
    return HEAD+f'; @launch grid=(256,1,1) block=({wg},1,1) lds={lds}\n.amdgcn_target "amdgcn-amd-amdhsa--gfx950"\n.text\n'+kernel_head(n)+b+'.section .rodata,"a"\n'+kernel_desc(n,vg,sg,96)
def build(path,tag=''):
    k,lds=kf.gen(NAME,final=final.final,setup=final.setup)
    open(path,'w').write(text(k,lds))
    build_module([k],96,'full'+tag)
    kf.DIAG=True
    k,lds=kf.gen(NAME,final=final.final,setup=final.setup)
    build_module([k],96,'diag'+tag)
    kf.DIAG=False
if __name__=='__main__':
    if len(sys.argv)>1: build('v_'+sys.argv[1]+'.s','_'+sys.argv[1])
    else: build('standalone__hybrid_graph_tf_nagphormer__graph.s')
```
